```python
import torch

def _softmax(x, axis=-1):
    return torch.softmax(x, dim=axis)
def _gelu(x):
    return torch.nn.functional.gelu(x, approximate="tanh")
def _silu(x):
    return torch.nn.functional.silu(x)
def _sigmoid(x):
    return torch.sigmoid(x)
def _layernorm(x, axis=-1, eps=1e-5):
    m = x.mean(dim=axis, keepdim=True)
    v = x.var(dim=axis, keepdim=True, unbiased=False)
    return (x - m) / torch.sqrt(v + eps)
def _scatter_add(tgt, idx, src, axis=0):
    return tgt.clone().index_add_(axis, idx, src)
def _segment_sum(src, seg, n):
    out = torch.zeros((n,) + src.shape[1:], dtype=src.dtype)
    return out.index_add_(0, seg, src)
def _pad(x, pw):
    flat = tuple(v for pair in reversed(pw) for v in pair)
    return torch.nn.functional.pad(x, flat)

kernel_name = 'gated_mix__gqa_block_cached__glu_gated_glu__decode'

def setup_inputs():

    _w = (lambda a: (lambda t: t.to(torch.bfloat16) if t.is_floating_point() else t)(torch.as_tensor(a)))
    def _A_setup():
        B, Sq, D = 2, 1, 448
        Hq, Hkv, Sk, Dh = 16, 8, 16384, 256
        assert Hq % Hkv == 0, (Hq, Hkv)
        return {
            "x": _w((lambda *s: torch.randn(*s, dtype=torch.bfloat16) * 0.05)(B, Sq, D)),
            "k_cache": _w((lambda *s: torch.randn(*s, dtype=torch.bfloat16) * 6.4)(B, Hkv, Sk, Dh)),
            "v_cache": _w((lambda *s: torch.randn(*s, dtype=torch.bfloat16) * 0.4)(B, Hkv, Sk, Dh)),
            "wq": _w((lambda *s: torch.randn(*s, dtype=torch.bfloat16) * 6.4)(D, Hq * Dh) * (D ** -0.5)),
            "wo": _w((lambda *s: torch.randn(*s, dtype=torch.bfloat16) * 0.4)(Hq * Dh, D) * ((Hq * Dh) ** -0.5)),
        }
    _A_in = _A_setup()

    def _B_setup():
        B, S, D, F = 2, 1, 448, 1792
        return {
            "x": _w((lambda *s: torch.randn(*s, dtype=torch.bfloat16) * 0.05)(B, S, D)),
            "w_gate": _w((lambda *s: torch.randn(*s, dtype=torch.bfloat16) * 0.4)(D, F)),
            "w_up": _w((lambda *s: torch.randn(*s, dtype=torch.bfloat16) * 0.05)(D, F)),
            "w_down": _w((lambda *s: torch.randn(*s, dtype=torch.bfloat16) * 0.05)(F, D)),
        }
    _B_in = _B_setup()

    return {
        "A_x": _A_in["x"],
        "A_k_cache": _A_in["k_cache"],
        "A_v_cache": _A_in["v_cache"],
        "A_wq": _A_in["wq"],
        "A_wo": _A_in["wo"],
        "B_x": _B_in["x"],
        "B_w_gate": _B_in["w_gate"],
        "B_w_up": _B_in["w_up"],
        "B_w_down": _B_in["w_down"],
        "gate_w": _w((lambda *s: torch.randn(*s, dtype=torch.bfloat16) * 0.05)(448) * 16.0),
    }

def reference(A_x, A_k_cache, A_v_cache, A_wq, A_wo, B_x, B_w_gate, B_w_up, B_w_down, gate_w):
    def _A_ref(x, k_cache, v_cache, wq, wo):
        B, Sq, D = x.shape
        Hq, Dh = 16, 256
        Hkv = k_cache.shape[1]
        rep = Hq // Hkv
        q = (lambda x, *d: x.permute(*d))((x @ wq).reshape(B, Sq, Hq, Dh), 0, 2, 1, 3)
        k = (lambda x, n, axis: torch.repeat_interleave(x, n, dim=axis))(k_cache, rep, axis=1)
        v = (lambda x, n, axis: torch.repeat_interleave(x, n, dim=axis))(v_cache, rep, axis=1)
        scores = torch.einsum("bhqd,bhkd->bhqk", q, k) * (Dh ** -0.5)
        p = _softmax(scores, axis=-1)
        o = torch.einsum("bhqk,bhkd->bhqd", p, v)
        return (lambda x, *d: x.permute(*d))(o, 0, 2, 1, 3).reshape(B, Sq, Hq * Dh) @ wo

    def _B_ref(x, w_gate, w_up, w_down):
        g = torch.einsum("bsd,df->bsf", x, w_gate)
        u = torch.einsum("bsd,df->bsf", x, w_up)
        h = _sigmoid(g) * u
        return torch.einsum("bsf,fd->bsd", h, w_down)

    x = A_x
    g = _sigmoid((x * gate_w).sum(-1, keepdims=True))
    a = _A_ref(x, A_k_cache, A_v_cache, A_wq, A_wo)
    b = _B_ref(x, B_w_gate, B_w_up, B_w_down)
    return g * a + (1 - g) * b
```

```python
import sys, json
NAME = 'gated_mix__gqa_block_cached__glu_gated_glu__decode'

HEADER = open('cdna_kernels/' + NAME + '.s.ref').read().split('; Override launch')[0]

WS_EPOCH = 0
WS_QG    = 0x1000
WS_SG    = 0x9000
WS_HG    = 0xB000
WS_P1    = 0x10000
WS_P2    = 0x50000
WS_END   = 0x90000
WS_STAMP = 0x100000
L_X   = 0x0000
L_Q   = 0x0800
L_ST  = 0x0C00
L_F   = 0x0C80
L_GL  = 0x0E00
L_WQ  = 0x1000
L_GW  = 0x4800
L_G1  = 0x5000
L_WD  = 0x9000
L_WO  = 0xB000
L_ACC = 0x1000
L_END = 0xF000

def gen(name=NAME, R=40, D=12, rot=768*1024, stamps=False, wflag='nt', sflag='nt', bar1=True, spin=400000):
    L = []
    def a(s): L.append('    ' + s)
    def lab(s): L.append(s + ':')
    def c(s): L.append('    ; ' + s)
    def srd(d, p, n):
        a(f's_mov_b32 s{d}, s{p}'); a(f's_and_b32 s{d+1}, s{p+1}, 0xffff')
        a(f's_mov_b32 s{d+2}, {n}'); a(f's_mov_b32 s{d+3}, 0x20000')
    nst = [0]
    def stamp(i):
        if stamps:
            a(f's_memrealtime s[{84+2*i}:{85+2*i}]')
    def stamp_flush():
        if not stamps: return
        a('s_waitcnt lgkmcnt(0)')
        a('s_mov_b64 exec, 1')
        a('s_getreg_b32 s83, hwreg(HW_REG_XCC_ID, 0, 4)')
        for i in range(8): a(f'v_mov_b32 v{8+i}, s{84+2*i}')
        a('v_mov_b32 v16, s83')
        a('s_mul_i32 s82, s2, 5'); a('s_add_u32 s82, s82, s3'); a('s_lshl_b32 s82, s82, 6')
        a(f's_add_u32 s82, s82, {WS_STAMP}')
        a('v_mov_b32 v2, s82')
        a('buffer_store_dwordx4 v[8:11], v2, s[56:59], 0 offen')
        a('buffer_store_dwordx4 v[12:15], v2, s[56:59], 0 offen offset:16')
        a('buffer_store_dword v16, v2, s[56:59], 0 offen offset:32')
    DPP = 'row_mask:0xf bank_mask:0xf'

    L.append(HEADER.rstrip('\n'))
    L.append(f'; @launch grid=(256,1,1) block=(320,1,1) lds={L_END}')
    L.append('.amdgcn_target "amdgcn-amd-amdhsa--gfx950"')
    L.append('.text'); L.append(f'.globl {name}_kernel'); L.append('.p2align 8')
    L.append(f'.type {name}_kernel,@function'); lab(f'{name}_kernel')
    if stamps:
        for i in range(8): a(f's_mov_b32 s{84+2*i}, 0')
    stamp(0)
    a('s_cmp_ge_u32 s2, 256')
    a('s_cbranch_scc1 L_end')
    a('s_load_dwordx16 s[16:31], s[0:1], 0')
    a('s_load_dwordx8 s[32:39], s[0:1], 64')
    a('s_load_dwordx2 s[40:41], s[0:1], 96')
    a('v_lshrrev_b32 v2, 6, v0')
    a('v_and_b32 v1, 63, v0')
    a('v_readfirstlane_b32 s3, v2')
    a('s_lshr_b32 s4, s2, 4')
    a('s_and_b32 s5, s2, 15')
    a('s_and_b32 s6, s2, 7')
    a('s_lshr_b32 s7, s2, 3')
    a('s_mul_i32 s8, s6, 28'); a('s_add_u32 s8, s8, s7')
    a('s_mul_i32 s9, s8, 9363'); a('s_lshr_b32 s9, s9, 16')
    a('s_mul_i32 s10, s9, 7'); a('s_sub_u32 s10, s8, s10')
    a('s_cmp_eq_u32 s3, 4')
    a('s_cbranch_scc1 L_service')

    c('================= streaming waves =================')
    a('v_bfe_u32 v44, v1, 2, 2'); a('v_lshlrev_b32 v2, 9, v44')
    a('v_lshrrev_b32 v45, 4, v1'); a('v_lshl_add_u32 v2, v45, 6, v2')
    a('v_and_b32 v44, 3, v1'); a('v_lshl_add_u32 v2, v44, 4, v2')
    a('v_lshlrev_b32 v3, 9, v45'); a('v_and_b32 v44, 15, v1'); a('v_lshl_add_u32 v3, v44, 4, v3')
    a('s_lshl_b32 s11, s4, 23')
    a('v_add_u32 v2, s11, v2'); a('v_add_u32 v3, s11, v3')
    a('s_lshl_b32 s44, s5, 2'); a('s_add_u32 s44, s44, s3'); a('s_lshl_b32 s44, s44, 12')
    a(f's_mul_i32 s11, s4, {rot}'); a('s_add_u32 s44, s44, s11'); a('s_and_b32 s44, s44, 0x7fffff')
    a('s_waitcnt lgkmcnt(0)')
    srd(48, 18, 1 << 27); srd(52, 20, 1 << 27)
    if bar1: a('s_barrier')
    RING = 88
    NL = 256
    def issue(i):
        r = RING + 4 * (i % R)
        isK = i < 128
        j = i % 4
        a(f'buffer_load_dwordx4 v[{r}:{r+3}], v{2 if isK else 3}, s[{48 if isK else 52}:{51 if isK else 55}], s44 offen offset:{(j>>1)*2048 + (j&1)*256} {sflag}')
        if j == 3:
            a('s_add_u32 s44, s44, 0x40000'); a('s_and_b32 s44, s44, 0x7fffff')
    def slot(i):
        r = RING + 4 * (i % R); return f'v[{r}:{r+3}]'
    def setup_item():
        c('--- one-time setup (runs while first loads are in flight)')
        srd(56, 40, WS_STAMP + 0x20000); srd(60, 24, 4096 * 896)
        a('v_and_b32 v44, 1, v1'); a('v_lshlrev_b32 v44, 4, v44'); a('v_mov_b32 v45, 0xffff'); a('v_lshlrev_b32 v45, v44, v45')
        a('v_bfe_u32 v44, v1, 1, 2')
        for r in range(4):
            a(f'v_cmp_eq_u32 vcc, {r}, v44'); a('s_nop 1'); a(f'v_cndmask_b32 v{4+r}, 0, v45, vcc')
        for r in range(24, 32): a(f'v_mov_b32 v{r}, 0')
        a('v_mov_b32 v46, 0xff800000'); a('v_mov_b32 v47, 0')
        a('v_bfe_u32 v44, v1, 3, 1'); a('v_lshlrev_b32 v80, 9, v44')
        a('v_lshrrev_b32 v44, 4, v1'); a('v_lshl_add_u32 v80, v44, 6, v80')
        a('v_and_b32 v44, 3, v1'); a('v_lshl_add_u32 v80, v44, 4, v80')
        a('s_lshr_b32 s12, s3, 1'); a('s_and_b32 s13, s3, 1')
        a('s_lshl_b32 s11, s9, 1'); a('s_add_u32 s14, s11, s12')
        a(f's_mul_i32 s11, s14, {64*896}')
        a('s_lshl_b32 s15, s10, 1'); a('s_add_u32 s15, s15, s13')
        a('s_lshl_b32 s42, s15, 6'); a('s_add_u32 s11, s11, s42')
        a('s_cmp_lt_u32 s7, 28'); a('s_cselect_b32 s11, s11, 0x40000000')
        a('v_lshrrev_b32 v44, 2, v1'); a('v_mul_u32_u24 v81, 896, v44')
        a('v_and_b32 v44, 3, v1'); a('v_lshl_add_u32 v81, v44, 4, v81'); a('v_add_u32 v81, s11, v81')
        a('s_mov_b32 s43, 0x3db8aa3b')
    def qload_item():
        c('--- wait for q')
        stamp(1)
        a('s_barrier')
        stamp(2)
        a('v_and_b32 v44, 4, v1'); a('v_cmp_ne_u32 vcc, 0, v44')
        a(f'ds_read_b128 v[8:11], v80 offset:{L_Q}')
        a(f'ds_read_b128 v[12:15], v80 offset:{L_Q+256}')
        a('s_waitcnt lgkmcnt(0)')
        for r in range(8): a(f'v_cndmask_b32 v{16+r}, 0, v{8+r}, vcc')
        for r in range(8): a(f'v_cndmask_b32 v{8+r}, v{8+r}, 0, vcc')
        a('s_nop 1')
    def kstep(k):
        i = 4 * k
        a(f'v_mfma_f32_16x16x32_bf16 v[32:35], {slot(i)}, v[8:11], 0')
        a(f'v_mfma_f32_16x16x32_bf16 v[32:35], {slot(i+1)}, v[12:15], v[32:35]')
        a(f'v_mfma_f32_16x16x32_bf16 v[32:35], {slot(i+2)}, v[16:19], v[32:35]')
        a(f'v_mfma_f32_16x16x32_bf16 v[32:35], {slot(i+3)}, v[20:23], v[32:35]')
        a('s_nop 7')
        a(f'v_mov_b32_dpp v44, v32 quad_perm:[0,0,0,0] {DPP}')
        a(f'v_mov_b32_dpp v45, v34 quad_perm:[2,2,2,2] {DPP}')
        a('s_nop 0')
        a(f'v_add_f32_dpp v44, v33, v44 quad_perm:[1,1,1,1] {DPP}')
        a(f'v_add_f32_dpp v45, v35, v45 quad_perm:[3,3,3,3] {DPP}')
        a(f'v_add_f32 v{48+k}, v44, v45')
        a(f'v_max_f32 v46, v46, v{48+k}')
    def xreduce(reg, op):
        a('s_nop 1')
        a(f'v_{op}_f32_dpp v{reg}, v{reg}, v{reg} row_half_mirror {DPP}')
        a(f'v_mov_b32 v44, v{reg}'); a('s_nop 1')
        a(f'v_permlane16_swap_b32 v44, v{reg}'); a('s_nop 1')
        a(f'v_{op}_f32 v{reg}, v44, v{reg}')
        a(f'v_mov_b32 v44, v{reg}'); a('s_nop 1')
        a(f'v_permlane32_swap_b32 v44, v{reg}'); a('s_nop 1')
        a(f'v_{op}_f32 v{reg}, v44, v{reg}')
    def maxred():
        stamp(3)
        xreduce(46, 'max')
        a('v_mul_f32 v46, s43, v46')
    def expchunk(k0, n):
        for k in range(k0, k0 + n): a(f'v_fma_f32 v{48+k}, v{48+k}, s43, -v46')
        for k in range(k0, k0 + n): a(f'v_exp_f32 v{48+k}, v{48+k}')
        a('s_nop 0')
        for k in range(k0, k0 + n):
            a(f'v_add_f32 v47, v47, v{48+k}')
            a(f'v_cvt_pk_bf16_f32 v{48+k}, v{48+k}, v{48+k}')
    def lred():
        xreduce(47, 'add')
        a('v_bfe_u32 v44, v1, 3, 1'); a('v_lshlrev_b32 v44, 5, v44')
        a('s_lshl_b32 s11, s3, 3'); a('v_add_u32 v44, s11, v44')
        a(f'ds_write_b64 v44, v[46:47] offset:{L_ST}')
    def vprep(k):
        p = 48 + k
        a(f'v_and_b32 v36, v{p}, v4'); a(f'v_and_b32 v37, v{p}, v5')
        a(f'v_and_b32_dpp v38, v{p}, v6 row_half_mirror {DPP}'); a(f'v_and_b32_dpp v39, v{p}, v7 row_half_mirror {DPP}')
        a(f'v_and_b32_dpp v40, v{p}, v4 row_half_mirror {DPP}'); a(f'v_and_b32_dpp v41, v{p}, v5 row_half_mirror {DPP}')
        a(f'v_and_b32 v42, v{p}, v6'); a(f'v_and_b32 v43, v{p}, v7')
        a('s_nop 1')
    def vmfma(k, j):
        i = 128 + 4 * k + j
        A = 'v[36:39]' if j < 2 else 'v[40:43]'
        acc = 'v[24:27]' if j % 2 == 0 else 'v[28:31]'
        a(f'v_mfma_f32_16x16x32_bf16 {acc}, {A}, {slot(i)}, {acc}')
    def vstep(k):
        vprep(k)
        for j in range(4): vmfma(k, j)
    items = []
    for k in range(32): items.append((4*k+4, 4*k+4, (lambda k=k: kstep(k))))
    items.append((128, 128, maxred))
    for k0 in range(0, 32, 8): items.append((128, 128, (lambda k0=k0: expchunk(k0, 8))))
    items.append((128, 128, lred))
    for k in range(32): items.append((128+4*k+4, 128+4*k+4, ('v', k)))
    def run(it):
        if isinstance(it[2], tuple): vstep(it[2][1])
        else: it[2]()
    nxt = 0; freed = 0; arrived = 0
    for i in range(NL):
        if i >= D:
            a(f's_waitcnt vmcnt({D-1})'); arrived = i - (D - 1)
        if i == R: qload_item()
        while i - R >= freed:
            assert items[nxt][0] <= arrived
            run(items[nxt]); freed = items[nxt][1]; nxt += 1
        issue(i)
        if i == D - 1: setup_item()
        if i >= R and i < NL - 1 and items[nxt][0] <= arrived:
            run(items[nxt]); freed = items[nxt][1]; nxt += 1
    c('--- wo tile DMA (4 x 1KB)')
    a(f's_lshl_b32 s11, s3, 12'); a(f's_add_u32 s11, s11, {L_WO}')
    for t in range(4):
        a('s_mov_b32 m0, s11')
        a(f's_mov_b32 s42, {t*16*896}')
        a(f'buffer_load_dwordx4 v81, s[60:63], s42 offen {wflag} lds')
        if t < 3: a('s_add_u32 s11, s11, 1024')
    total = NL + 4
    c('--- precompute tail addresses')
    a('v_lshrrev_b32 v44, 5, v1'); a('v_lshlrev_b32 v82, 10, v44')
    a('v_and_b32 v44, 15, v1'); a('v_lshl_add_u32 v82, v44, 5, v82')
    a('v_bfe_u32 v44, v1, 4, 1'); a('v_lshl_add_u32 v82, v44, 4, v82')
    a('s_lshl_b32 s11, s3, 11'); a('v_add_u32 v82, s11, v82')
    a('s_lshl_b32 s11, s3, 9'); a('v_lshlrev_b32 v83, 3, v1'); a('v_add_u32 v83, s11, v83')
    a('s_lshl_b32 s11, s4, 1'); a('s_add_u32 s11, s11, s12'); a('s_lshl_b32 s11, s11, 4'); a('s_add_u32 s11, s11, s5')
    a('s_lshl_b32 s11, s11, 9'); a('s_lshl_b32 s42, s13, 8'); a('s_add_u32 s11, s11, s42'); a(f's_add_u32 s11, s11, {WS_P1}')
    a('v_lshlrev_b32 v84, 2, v1'); a('v_add_u32 v84, s11, v84')
    a('s_lshr_b32 s11, s14, 2'); a('s_lshl_b32 s11, s11, 13'); a('s_and_b32 s42, s14, 3'); a('s_lshl_b32 s42, s42, 7')
    a('s_add_u32 s11, s11, s42'); a(f's_add_u32 s11, s11, {WS_P1}')
    a('v_and_b32 v44, 15, v1'); a('v_lshlrev_b32 v85, 9, v44'); a('v_lshrrev_b32 v44, 4, v1'); a('v_lshl_add_u32 v85, v44, 4, v85')
    a('v_add_u32 v85, s11, v85')
    a('v_lshrrev_b32 v44, 4, v1'); a('v_lshlrev_b32 v86, 9, v44'); a('v_bfe_u32 v44, v1, 2, 2'); a('v_lshl_add_u32 v86, v44, 6, v86')
    a('v_and_b32 v44, 3, v1'); a('v_lshl_add_u32 v86, v44, 3, v86')
    a('s_lshl_b32 s11, s3, 12'); a('v_add_u32 v86, s11, v86')
    a('v_lshrrev_b32 v44, 5, v1'); a('v_mul_u32_u24 v87, 112, v44'); a('v_bfe_u32 v44, v1, 2, 3'); a('v_add_u32 v87, v87, v44')
    a('v_lshlrev_b32 v87, 10, v87')
    a('s_lshl_b32 s11, s15, 13'); a('s_lshl_b32 s42, s14, 4'); a('s_add_u32 s11, s11, s42'); a(f's_add_u32 s11, s11, {WS_P2}')
    a('v_add_u32 v87, s11, v87')
    a('v_lshrrev_b32 v44, 5, v1'); a('v_lshlrev_b32 v80, 8, v44'); a('v_and_b32 v44, 31, v1'); a('v_lshl_add_u32 v80, v44, 2, v80')
    a('s_lshl_b32 s11, s13, 7'); a('v_add_u32 v80, s11, v80')
    a('s_lshl_b32 s11, s12, 4'); a('v_mov_b32 v81, s11')
    a('s_mov_b32 s46, 0x11111111'); a('s_mov_b32 s47, 0x11111111')
    a('s_mov_b32 s45, 0x20000')
    while nxt < len(items):
        it = items[nxt]; k = it[2][1]
        vprep(k)
        for j in range(4):
            need = 128 + 4 * k + j + 1
            if need > arrived:
                a(f's_waitcnt vmcnt({total - need})'); arrived = need
            vmfma(k, j)
        nxt += 1
    stamp(4)
    c('--- workgroup combine')
    a('s_nop 6')
    a(f'ds_write_b128 v82, v[24:27] offset:{L_ACC}')
    a(f'ds_write_b128 v82, v[28:31] offset:{L_ACC+512}')
    a('s_waitcnt lgkmcnt(0)')
    a('s_barrier')
    a(f'ds_read_b128 v[32:35], v81 offset:{L_F}')
    for w in range(4): a(f'ds_read_b64 v[{36+2*w}:{37+2*w}], v83 offset:{L_ACC+2048*w}')
    a('s_waitcnt lgkmcnt(0)')
    a('v_mul_f32 v44, v32, v36'); a('v_mul_f32 v45, v32, v37')
    for w in range(1, 4):
        a(f'v_fmac_f32 v44, v{32+w}, v{36+2*w}'); a(f'v_fmac_f32 v45, v{32+w}, v{37+2*w}')
    a('v_cvt_pk_bf16_f32 v24, v44, v45')
    a('v_min_u32 v24, -2, v24')
    a('s_nop 1')
    for r in range(1, 4): a(f'v_mov_b32_dpp v{24+r}, v24 quad_perm:[{r},{r},{r},{r}] {DPP}')
    a('s_mov_b64 exec, s[46:47]')
    a('buffer_store_dwordx4 v[24:27], v84, s[56:59], 0 offen sc1')
    a('s_mov_b64 exec, -1')
    stamp(5)
    a('s_cmp_ge_u32 s7, 28')
    a('s_cbranch_scc1 L_stream_done')
    c('--- stage 2')
    a('s_waitcnt vmcnt(1)')
    for t in range(2):
        for ct in range(2):
            r = 48 + 8 * t + 4 * ct
            a(f'ds_read_b64_tr_b16 v[{r}:{r+1}], v86 offset:{L_WO + t*2048 + ct*32}')
            a(f'ds_read_b64_tr_b16 v[{r+2}:{r+3}], v86 offset:{L_WO + t*2048 + ct*32 + 256}')
    a(f'ds_read_b32 v47, v80 offset:{L_GL}')
    a(f's_mov_b32 s11, {spin}')
    lab('L_poll_p1')
    a('buffer_load_dwordx4 v[64:67], v85, s[56:59], 0 offen sc1')
    a('buffer_load_dwordx4 v[68:71], v85, s[56:59], 0 offen offset:64 sc1')
    a('buffer_load_dwordx4 v[72:75], v85, s[56:59], s45 offen sc1')
    a('buffer_load_dwordx4 v[76:79], v85, s[56:59], s45 offen offset:64 sc1')
    a('s_sub_u32 s11, s11, 1')
    a('s_cbranch_scc1 L_p1_ok')
    a('s_waitcnt vmcnt(3)')
    a('v_max3_u32 v44, v64, v65, v66')
    a('s_waitcnt vmcnt(2)')
    a('v_max3_u32 v44, v44, v67, v68'); a('v_max3_u32 v45, v69, v70, v71')
    a('s_waitcnt vmcnt(1)')
    a('v_max3_u32 v44, v44, v72, v73'); a('v_max3_u32 v45, v45, v74, v75')
    a('s_waitcnt vmcnt(0)')
    a('v_max3_u32 v44, v44, v76, v77'); a('v_max3_u32 v45, v45, v78, v79')
    a('v_max_u32 v44, v44, v45')
    a('v_cmp_eq_u32 vcc, -1, v44')
    a('s_cbranch_vccnz L_poll_p1')
    lab('L_p1_ok')
    a('s_waitcnt vmcnt(0) lgkmcnt(0)')
    stamp(6)
    for t in range(2):
        for b in range(2):
            for ct in range(2):
                d = 8 + 8 * b + 4 * ct; A = 64 + 8 * b + 4 * t; B = 48 + 8 * t + 4 * ct
                a(f'v_mfma_f32_16x16x32_bf16 v[{d}:{d+3}], v[{A}:{A+3}], v[{B}:{B+3}], {"0" if t == 0 else f"v[{d}:{d+3}]"}')
    a('s_cmp_eq_u32 s12, 0'); a('s_cselect_b32 s11, 1.0, 0')
    a('s_nop 3')
    for q in range(4):
        d = 8 + 4 * q
        if q == 3: a('s_nop 1')
        a(f'v_add_f32 v{d}, v{d}, v{d+1}'); a(f'v_add_f32 v{d+2}, v{d+2}, v{d+3}')
    for q in range(4):
        d = 8 + 4 * q
        a(f'v_add_f32 v{d}, v{d}, v{d+2}')
    a('s_nop 1')
    a('v_permlane32_swap_b32 v8, v16'); a('v_permlane32_swap_b32 v12, v20')
    a('s_nop 1')
    a('v_add_f32 v8, v8, v16'); a('v_add_f32 v12, v12, v20')
    a('s_nop 1')
    a('v_permlane16_swap_b32 v8, v12')
    a('s_nop 1')
    a('v_add_f32 v8, v8, v12')
    a('v_fmac_f32 v8, s11, v47')
    a('v_min_u32 v8, -2, v8')
    a('s_nop 1')
    for r in range(1, 4): a(f'v_mov_b32_dpp v{8+r}, v8 quad_perm:[{r},{r},{r},{r}] {DPP}')
    a('s_mov_b64 exec, s[46:47]')
    a('buffer_store_dwordx4 v[8:11], v87, s[56:59], 0 offen sc1')
    a('s_mov_b64 exec, -1')
    lab('L_stream_done')
    if stamps:
        a('s_waitcnt vmcnt(0)')
        stamp(7)
    stamp_flush()
    a('s_endpgm')

    lab('L_service')
    c('================= service wave =================')
    a('v_lshlrev_b32 v2, 4, v1')
    a('v_lshrrev_b32 v3, 1, v1'); a('v_lshlrev_b32 v3, 13, v3'); a('v_and_b32 v4, 1, v1'); a('v_lshl_add_u32 v3, v4, 4, v3')
    a('s_lshl_b32 s11, s6, 5'); a('s_add_u32 s11, s11, s7'); a('s_lshl_b32 s12, s11, 5')
    a('v_add_u32 v3, s12, v3')
    a(f's_mov_b32 m0, {L_X}')
    a('s_waitcnt lgkmcnt(0)')
    a('s_load_dword s46, s[40:41], 0')
    srd(48, 16, 1792); srd(52, 22, 448 * 8192)
    a('buffer_load_dwordx4 v2, s[48:51], 0 offen lds')
    a('buffer_load_dwordx4 v2, s[48:51], 0 offen offset:1024 lds')
    for i in range(14):
        a(f's_mov_b32 m0, {L_WQ + i*1024}')
        a(f's_mov_b32 s12, {i*32*8192}')
        a(f'buffer_load_dwordx4 v3, s[52:55], s12 offen {wflag} lds')
    if bar1: a('s_barrier')
    srd(56, 40, WS_STAMP + 0x20000)
    c('--- resets of part1 / part2 (1KB each per workgroup) and LDS clears')
    for r in range(4): a(f'v_mov_b32 v{120+r}, -1')
    a('s_lshl_b32 s12, s2, 10'); a('v_add_u32 v4, s12, v2')
    a(f's_mov_b32 s12, {WS_P1}'); a(f's_mov_b32 s13, {WS_P2}')
    a('buffer_store_dwordx4 v[120:123], v4, s[56:59], s12 offen sc1')
    a('buffer_store_dwordx4 v[120:123], v4, s[56:59], s13 offen sc1')
    srd(60, 34, 896)
    a(f's_mov_b32 m0, {L_GW}')
    a('v_mov_b32 v124, 0'); a('v_mov_b32 v125, 0')
    a('buffer_load_dwordx4 v2, s[60:63], 0 offen lds')
    a('v_lshlrev_b32 v5, 3, v1')
    a(f'ds_write_b64 v5, v[124:125] offset:{L_ST}')
    a(f'ds_write_b64 v5, v[124:125] offset:{L_GL}')
    a('v_bfe_u32 v4, v1, 2, 1'); a('v_mul_u32_u24 v6, 896, v4'); a('v_lshrrev_b32 v4, 4, v1'); a('v_lshl_add_u32 v6, v4, 4, v6')
    a('v_lshlrev_b32 v7, 8, v4'); a('v_and_b32 v5, 15, v1'); a('v_lshl_add_u32 v7, v5, 3, v7')
    a('v_bfe_u32 v4, v1, 4, 1'); a('v_lshlrev_b32 v126, 14, v4'); a('v_lshl_add_u32 v126, v5, 2, v126')
    a('s_lshl_b32 s12, s6, 11'); a('s_lshl_b32 s13, s7, 6'); a('s_add_u32 s12, s12, s13'); a(f's_add_u32 s12, s12, {WS_QG}')
    a('v_add_u32 v126, s12, v126')
    a('s_lshl_b32 s12, s4, 11'); a(f's_add_u32 s12, s12, {WS_QG}'); a('v_lshlrev_b32 v127, 5, v1'); a('v_add_u32 v127, s12, v127')
    a('s_waitcnt lgkmcnt(0)')
    a('s_mul_i32 s46, s46, 1664525'); a('s_add_u32 s46, s46, 1013904223')
    a('s_waitcnt vmcnt(17)')
    for t in range(14): a(f'ds_read_b128 v[{8+4*t}:{11+4*t}], v6 offset:{L_X + 64*t}')
    a('s_waitcnt vmcnt(3)')
    stamp(1)
    for t in range(14):
        a(f'ds_read_b64_tr_b16 v[{64+4*t}:{65+4*t}], v7 offset:{L_WQ + 1024*t}')
        a(f'ds_read_b64_tr_b16 v[{66+4*t}:{67+4*t}], v7 offset:{L_WQ + 1024*t + 128}')
    a('s_waitcnt lgkmcnt(0)')
    def chain(dreg):
        for t in range(14):
            a(f'v_mfma_f32_16x16x32_bf16 v[{dreg}:{dreg+3}], v[{8+4*t}:{11+4*t}], v[{64+4*t}:{67+4*t}], {"0" if t == 0 else f"v[{dreg}:{dreg+3}]"}')
        a('s_nop 7')
    chain(120)
    a(f'v_mov_b32_dpp v121, v120 quad_perm:[1,0,3,2] {DPP}')
    a('v_cvt_pk_bf16_f32 v122, v120, v121')
    a('v_mov_b32 v123, s46')
    a('s_mov_b32 exec_lo, 0x55555555'); a('s_mov_b32 exec_hi, 0')
    a('buffer_store_dwordx2 v[122:123], v126, s[56:59], 0 offen sc1')
    a('s_mov_b64 exec, -1')
    stamp(2)
    a(f's_mov_b32 s11, {spin}')
    lab('L_poll_q')
    a('buffer_load_dwordx4 v[64:67], v127, s[56:59], 0 offen sc1')
    a('buffer_load_dwordx4 v[68:71], v127, s[56:59], 0 offen offset:16 sc1')
    a('s_sub_u32 s11, s11, 1')
    a('s_cbranch_scc1 L_q_ok')
    a('s_waitcnt vmcnt(0)')
    def tagcheck(regs):
        a(f'v_xor_b32 v4, s46, v{regs[0]}')
        for r in regs[1:]:
            a(f'v_xor_b32 v5, s46, v{r}'); a('v_or_b32 v4, v4, v5')
        a('v_cmp_ne_u32 vcc, 0, v4')
    tagcheck([65, 67, 69, 71])
    a('s_cbranch_vccnz L_poll_q')
    lab('L_q_ok')
    a('s_waitcnt vmcnt(0)')
    a('v_mov_b32 v65, v66'); a('v_mov_b32 v66, v68'); a('v_mov_b32 v67, v70')
    a(f'ds_write_b128 v2, v[64:67] offset:{L_Q}')
    a('s_waitcnt lgkmcnt(0)')
    stamp(3)
    a('s_barrier')
    c('--- arrival counter (resets are complete: vmcnt(0) passed above)')
    srd(64, 38, 256)
    a('v_mov_b32 v4, 1'); a('v_mov_b32 v5, 0')
    a('s_mov_b64 exec, 1')
    a('buffer_atomic_add v4, v5, s[64:67], 0 offen sc1')
    a('s_mov_b64 exec, -1')
    c('--- mix gate g_b : lane group (l>>4)&1 = b')
    a('v_lshrrev_b32 v4, 4, v1'); a('v_lshlrev_b32 v4, 4, v4')
    for t in range(14): a(f'ds_read_b128 v[{64+4*t}:{67+4*t}], v4 offset:{L_GW + 64*t}')
    a('s_waitcnt lgkmcnt(0)')
    chain(120)
    def sigmoid(dst, src):
        a(f'v_mul_f32 v{dst}, 0xbfb8aa3b, v{src}'); a(f'v_exp_f32 v{dst}, v{dst}'); a('s_nop 0')
        a(f'v_add_f32 v{dst}, 1.0, v{dst}'); a(f'v_rcp_f32 v{dst}, v{dst}'); a('s_nop 0')
    sigmoid(128, 120)
    a('v_sub_f32 v129, 1.0, v128')
    a('s_lshr_b32 s12, s4, 3'); a('s_lshl_b32 s12, s12, 4')
    a('s_nop 0')
    a('v_readlane_b32 s47, v128, s12')
    a('s_cmp_ge_u32 s7, 28')
    a('s_cbranch_scc1 L_glu_done')
    c('--- GLU stage 1')
    srd(48, 28, 448 * 3584); srd(52, 30, 448 * 3584)
    a('v_mul_u32_u24 v3, 3584, v1'); a('s_lshl_b32 s12, s8, 4'); a('v_add_u32 v3, s12, v3')
    for i in range(14):
        a(f's_mov_b32 m0, {L_G1 + i*1024}')
        a(f's_mov_b32 s12, {(i%7)*64*3584}')
        a(f'buffer_load_dwordx4 v3, s[{48 if i < 7 else 52}:{51 if i < 7 else 55}], s12 offen {wflag} lds')
        a('s_waitcnt vmcnt(2)')
    srd(48, 32, 1792 * 896)
    a('v_lshrrev_b32 v4, 3, v1'); a('v_mul_u32_u24 v3, 896, v4'); a('v_and_b32 v4, 7, v1'); a('v_lshl_add_u32 v3, v4, 4, v3')
    a(f's_mul_i32 s12, s9, {64*896}'); a('s_lshl_b32 s13, s10, 7'); a('s_add_u32 s12, s12, s13'); a('v_add_u32 v3, s12, v3')
    a('v_lshrrev_b32 v4, 4, v1'); a('v_lshlrev_b32 v7, 7, v4'); a('v_bfe_u32 v4, v1, 2, 2'); a('v_lshl_add_u32 v7, v4, 4, v7')
    a('v_and_b32 v4, 1, v1'); a('v_lshl_add_u32 v7, v4, 3, v7'); a('v_bfe_u32 v4, v1, 1, 1'); a('v_mul_u32_u24 v4, 7168, v4'); a('v_add_u32 v7, v7, v4')
    a('s_waitcnt vmcnt(0)')
    for i in range(8):
        a(f's_mov_b32 m0, {L_WD + i*1024}')
        a(f's_mov_b32 s12, {i*8*896}')
        a(f'buffer_load_dwordx4 v3, s[48:51], s12 offen {wflag} lds')
    for t in range(14):
        a(f'ds_read_b64_tr_b16 v[{64+4*t}:{65+4*t}], v7 offset:{L_G1 + 512*t}')
        a(f'ds_read_b64_tr_b16 v[{66+4*t}:{67+4*t}], v7 offset:{L_G1 + 512*t + 64}')
    a('s_waitcnt lgkmcnt(0)')
    chain(120)
    a(f'v_mov_b32_dpp v121, v120 row_ror:8 {DPP}')
    sigmoid(122, 120)
    a('v_mul_f32 v122, v122, v121')
    a('s_nop 1')
    a(f'v_mov_b32_dpp v121, v122 quad_perm:[1,0,3,2] {DPP}')
    a('v_cvt_pk_bf16_f32 v122, v122, v121')
    a('v_mov_b32 v123, s46')
    a('v_bfe_u32 v4, v1, 4, 1'); a('v_mul_u32_u24 v5, 7168, v4'); a('v_and_b32 v4, 15, v1'); a('v_lshl_add_u32 v5, v4, 2, v5')
    a('s_lshl_b32 s12, s8, 5'); a(f's_add_u32 s12, s12, {WS_HG}'); a('v_add_u32 v5, s12, v5')
    a('s_mov_b32 exec_lo, 0x00550055'); a('s_mov_b32 exec_hi, 0')
    a('buffer_store_dwordx2 v[122:123], v5, s[56:59], 0 offen sc1')
    a('s_mov_b64 exec, -1')
    a('s_cmp_ge_u32 s9, 28')
    a('s_cbranch_scc1 L_glu_done')
    c('--- GLU stage 2')
    a('v_bfe_u32 v4, v1, 2, 1'); a('v_mul_u32_u24 v6, 7168, v4'); a('v_lshrrev_b32 v4, 4, v1'); a('v_lshl_add_u32 v6, v4, 5, v6')
    a('s_lshl_b32 s12, s9, 8'); a(f's_add_u32 s12, s12, {WS_HG}'); a('v_add_u32 v6, s12, v6')
    a('v_lshlrev_b32 v7, 10, v4'); a('v_bfe_u32 v4, v1, 2, 2'); a('v_lshl_add_u32 v7, v4, 7, v7')
    a('v_and_b32 v4, 3, v1'); a('v_lshl_add_u32 v7, v4, 3, v7')
    a(f's_mov_b32 s11, {spin}')
    lab('L_poll_h')
    a('s_sleep 8')
    a('buffer_load_dwordx4 v[8:11], v6, s[56:59], 0 offen sc1')
    a('buffer_load_dwordx4 v[12:15], v6, s[56:59], 0 offen offset:16 sc1')
    a('buffer_load_dwordx4 v[16:19], v6, s[56:59], 0 offen offset:128 sc1')
    a('buffer_load_dwordx4 v[20:23], v6, s[56:59], 0 offen offset:144 sc1')
    a('s_sub_u32 s11, s11, 1')
    a('s_cbranch_scc1 L_h_ok')
    a('s_waitcnt vmcnt(0)')
    tagcheck([9, 11, 13, 15, 17, 19, 21, 23])
    a('s_cbranch_vccnz L_poll_h')
    lab('L_h_ok')
    a('s_waitcnt vmcnt(0)')
    a('v_mov_b32 v9, v10'); a('v_mov_b32 v10, v12'); a('v_mov_b32 v11, v14')
    a('v_mov_b32 v17, v18'); a('v_mov_b32 v18, v20'); a('v_mov_b32 v19, v22')
    for t in range(2):
        for ct in range(4):
            r = 64 + 16 * t + 4 * ct
            a(f'ds_read_b64_tr_b16 v[{r}:{r+1}], v7 offset:{L_WD + t*4096 + ct*32}')
            a(f'ds_read_b64_tr_b16 v[{r+2}:{r+3}], v7 offset:{L_WD + t*4096 + ct*32 + 512}')
    a('s_waitcnt lgkmcnt(0)')
    for t in range(2):
        for ct in range(4):
            d = 24 + 4 * ct; B = 64 + 16 * t + 4 * ct; A = 8 + 8 * t
            a(f'v_mfma_f32_16x16x32_bf16 v[{d}:{d+3}], v[{A}:{A+3}], v[{B}:{B+3}], {"0" if t == 0 else f"v[{d}:{d+3}]"}')
    a('v_bfe_u32 v4, v1, 4, 1'); a('v_lshlrev_b32 v5, 8, v4'); a('v_and_b32 v4, 15, v1'); a('v_lshl_add_u32 v5, v4, 2, v5')
    a('s_nop 7')
    for ct in range(4):
        a(f'v_mul_f32 v{24+4*ct}, v129, v{24+4*ct}')
        a(f'ds_write_b32 v5, v{24+4*ct} offset:{L_GL + 64*ct}')
    lab('L_glu_done')
    stamp(4)
    c('--- softmax statistics: lane -> hd=(l>>4)&1, w=l&3')
    a('v_bfe_u32 v4, v1, 4, 1'); a('v_lshlrev_b32 v6, 5, v4'); a('v_and_b32 v5, 3, v1'); a('v_lshl_add_u32 v6, v5, 3, v6')
    a(f's_mov_b32 s11, {spin*4}')
    lab('L_poll_st')
    a('s_sleep 16')
    a(f'ds_read_b64 v[8:9], v6 offset:{L_ST}')
    a('s_sub_u32 s11, s11, 1')
    a('s_cbranch_scc1 L_st_ok')
    a('s_waitcnt lgkmcnt(0)')
    a('v_cmp_eq_u32 vcc, 0, v9')
    a('s_cbranch_vccnz L_poll_st')
    lab('L_st_ok')
    a('s_waitcnt lgkmcnt(0)')
    a(f'v_max_f32_dpp v12, v8, v8 quad_perm:[1,0,3,2] {DPP}'); a('s_nop 1')
    a(f'v_max_f32_dpp v12, v12, v12 quad_perm:[2,3,0,1] {DPP}')
    a('v_sub_f32 v14, v8, v12'); a('v_exp_f32 v14, v14'); a('s_nop 0'); a('v_mul_f32 v14, v14, v9'); a('s_nop 1')
    a(f'v_add_f32_dpp v14, v14, v14 quad_perm:[1,0,3,2] {DPP}'); a('s_nop 1')
    a(f'v_add_f32_dpp v14, v14, v14 quad_perm:[2,3,0,1] {DPP}')
    a('v_mov_b32 v13, s46'); a('v_mov_b32 v15, s46')
    a('v_lshlrev_b32 v5, 8, v4')
    a('s_lshl_b32 s12, s4, 9'); a(f's_add_u32 s12, s12, {WS_SG}'); a('v_add_u32 v5, s12, v5')
    a('s_lshl_b32 s13, s5, 4')
    a('s_mov_b32 exec_lo, 0x00010001'); a('s_mov_b32 exec_hi, 0')
    a('buffer_store_dwordx4 v[12:15], v5, s[56:59], s13 offen sc1')
    a('s_mov_b64 exec, -1')
    a('v_and_b32 v7, 15, v1'); a('v_lshl_add_u32 v7, v7, 4, v5')
    a(f's_mov_b32 s11, {spin}')
    lab('L_poll_sg')
    a('s_sleep 8')
    a('buffer_load_dwordx4 v[16:19], v7, s[56:59], 0 offen sc1')
    a('s_sub_u32 s11, s11, 1')
    a('s_cbranch_scc1 L_sg_ok')
    a('s_waitcnt vmcnt(0)')
    tagcheck([17, 19])
    a('s_cbranch_vccnz L_poll_sg')
    lab('L_sg_ok')
    a('s_waitcnt vmcnt(0)')
    a(f'v_max_f32_dpp v20, v16, v16 row_ror:8 {DPP}')
    for sh in (4, 2, 1):
        a('s_nop 1'); a(f'v_max_f32_dpp v20, v20, v20 row_ror:{sh} {DPP}')
    a('v_sub_f32 v21, v16, v20'); a('v_exp_f32 v21, v21'); a('s_nop 0'); a('v_mul_f32 v21, v21, v18')
    for sh in (8, 4, 2, 1):
        a('s_nop 1'); a(f'v_add_f32_dpp v21, v21, v21 row_ror:{sh} {DPP}')
    a('v_rcp_f32 v21, v21')
    a('v_sub_f32 v22, v8, v20'); a('v_exp_f32 v22, v22'); a('s_nop 0')
    a('v_mul_f32 v22, v22, v21'); a('v_mul_f32 v22, s47, v22')
    a('v_lshrrev_b32 v6, 1, v6')
    a(f'ds_write_b32 v6, v22 offset:{L_F}')
    c('--- all workgroups have reset their slots and read the epoch?')
    a('v_mov_b32 v5, 0')
    a(f's_mov_b32 s11, {spin}')
    lab('L_poll_cnt')
    a('buffer_load_dword v4, v5, s[64:67], 0 offen sc1')
    a('s_sub_u32 s11, s11, 1')
    a('s_cbranch_scc1 L_cnt_ok')
    a('s_waitcnt vmcnt(0)')
    a('v_cmp_gt_u32 vcc, 0x100, v4')
    a('s_cbranch_vccnz L_poll_cnt')
    lab('L_cnt_ok')
    a('s_cmp_lg_u32 s2, 0')
    a('s_cbranch_scc1 L_no_epoch')
    a('v_mov_b32 v6, s46')
    a('s_mov_b64 exec, 1')
    a('buffer_store_dword v6, v5, s[56:59], 0 offen sc1')
    a('s_mov_b64 exec, -1')
    lab('L_no_epoch')
    srd(48, 36, 1792)
    a('s_lshl_b32 s12, s8, 10'); a(f's_add_u32 s12, s12, {WS_P2}'); a('v_add_u32 v2, s12, v2')
    a('v_lshrrev_b32 v3, 4, v1'); a('v_lshlrev_b32 v3, 1, v3'); a('s_lshl_b32 s12, s8, 3'); a('v_add_u32 v3, s12, v3')
    a('s_waitcnt vmcnt(0) lgkmcnt(0)')
    stamp(5)
    a('s_barrier')
    a('s_cmp_ge_u32 s7, 28')
    a('s_cbranch_scc1 L_service_done')
    a(f's_mov_b32 s11, {spin}')
    lab('L_poll_p2')
    a('buffer_load_dwordx4 v[8:11], v2, s[56:59], 0 offen sc1')
    a('s_sub_u32 s11, s11, 1')
    a('s_cbranch_scc1 L_p2_ok')
    a('s_waitcnt vmcnt(0)')
    a('v_max3_u32 v4, v8, v9, v10'); a('v_max_u32 v4, v4, v11')
    a('v_cmp_eq_u32 vcc, -1, v4')
    a('s_cbranch_vccnz L_poll_p2')
    lab('L_p2_ok')
    a('s_waitcnt vmcnt(0)')
    stamp(6)
    a('v_permlane32_swap_b32 v8, v10'); a('v_permlane32_swap_b32 v9, v11')
    a('s_nop 1')
    a('v_add_f32 v8, v8, v10'); a('v_add_f32 v9, v9, v11')
    a('s_nop 1')
    a('v_permlane16_swap_b32 v8, v9')
    a('s_nop 1')
    a('v_add_f32 v8, v8, v9')
    for sh in (8, 4, 2, 1):
        a('s_nop 1'); a(f'v_add_f32_dpp v8, v8, v8 row_ror:{sh} {DPP}')
    a('v_cvt_pk_bf16_f32 v8, v8, v8')
    a('s_mov_b32 exec_lo, 0x00010001'); a('s_mov_b32 exec_hi, 0x00010001')
    a('buffer_store_short v8, v3, s[48:51], 0 offen')
    lab('L_service_done')
    if stamps:
        a('s_waitcnt vmcnt(0)')
        stamp(7)
    stamp_flush()
    lab('L_end')
    a('s_endpgm')
    L.append('.section .rodata,"a"'); L.append('.p2align 6'); L.append(f'.amdhsa_kernel {name}_kernel')
    L.append('  .amdhsa_next_free_vgpr 256'); L.append('  .amdhsa_next_free_sgpr 102'); L.append('  .amdhsa_accum_offset 256')
    L.append('  .amdhsa_group_segment_fixed_size 0'); L.append('  .amdhsa_kernarg_size 104'); L.append('  .amdhsa_user_sgpr_count 2')
    L.append('  .amdhsa_user_sgpr_kernarg_segment_ptr 1'); L.append('  .amdhsa_system_sgpr_workgroup_id_x 1')
    L.append('  .amdhsa_float_denorm_mode_32 3')
    L.append('.end_amdhsa_kernel')
    return '\n'.join(L) + '\n'

if __name__ == '__main__':
    kw = json.loads(sys.argv[2]) if len(sys.argv) > 2 else {}
    open(sys.argv[1], 'w').write(gen(**kw))
```

```python
import sys, json
NAME = 'gated_mix__gqa_block_cached__glu_gated_glu__decode'

HEADER = open('cdna_kernels/' + NAME + '.s.ref').read().split('; Override launch')[0]

WS_EPOCH = 0
WS_QG    = 0x1000
WS_SG    = 0x9000
WS_HG    = 0xB000
WS_P1    = 0x10000
WS_P2    = 0x50000
WS_END   = 0x90000
WS_STAMP = 0x100000
L_X   = 0x0000
L_Q   = 0x0800
L_ST  = 0x0C00
L_F   = 0x0C80
L_GL  = 0x0E00
L_WQ  = 0x1000
L_GW  = 0x4800
L_G1  = 0x5000
L_WD  = 0x9000
L_WO  = 0xB000
L_ACC = 0x1000
L_END = 0xF000

def gen(name=NAME, R=40, D=12, rot=768*1024, stamps=False, wflag='nt', sflag='nt', bar1=True, spin=400000, diag=None):
    if diag: stamps = True
    L = []
    def a(s): L.append('    ' + s)
    def lab(s): L.append(s + ':')
    def c(s): L.append('    ; ' + s)
    def srd(d, p, n):
        a(f's_mov_b32 s{d}, s{p}'); a(f's_and_b32 s{d+1}, s{p+1}, 0xffff')
        a(f's_mov_b32 s{d+2}, {n}'); a(f's_mov_b32 s{d+3}, 0x20000')
    nst = [0]
    def stamp(i):
        if stamps:
            a(f's_memrealtime s[{84+2*i}:{85+2*i}]')
    def stamp_flush(kind):
        if not stamps: return
        a('s_waitcnt lgkmcnt(0)')
        if diag:
            if diag[0] == kind:
                i, sign = diag[1], diag[2]
                a(f's_cmp_eq_u32 s{84+2*i}, 0'); a(f's_cbranch_scc1 L_dg_{kind}_x')
                a(f's_sub_u32 s82, s{84+2*i}, s84')
                a(f's_mul_i32 s82, s82, {sign}'); a('s_add_u32 s82, s82, 10000')
                lab(f'L_dg_{kind}')
                a('s_sleep 4')
                a('s_memrealtime s[80:81]'); a('s_waitcnt lgkmcnt(0)')
                a('s_sub_u32 s83, s80, s84'); a('s_cmp_lt_u32 s83, s82'); a(f's_cbranch_scc1 L_dg_{kind}')
                lab(f'L_dg_{kind}_x')
            return
        a('s_mov_b64 exec, 1')
        a('s_getreg_b32 s83, hwreg(HW_REG_XCC_ID, 0, 4)')
        for i in range(8): a(f'v_mov_b32 v{8+i}, s{84+2*i}')
        a('v_mov_b32 v16, s83')
        a('s_mul_i32 s82, s2, 5'); a('s_add_u32 s82, s82, s3'); a('s_lshl_b32 s82, s82, 6')
        a(f's_add_u32 s82, s82, {WS_STAMP}')
        a('v_mov_b32 v2, s82')
        a('buffer_store_dwordx4 v[8:11], v2, s[56:59], 0 offen')
        a('buffer_store_dwordx4 v[12:15], v2, s[56:59], 0 offen offset:16')
        a('buffer_store_dword v16, v2, s[56:59], 0 offen offset:32')
    DPP = 'row_mask:0xf bank_mask:0xf'

    L.append(HEADER.rstrip('\n'))
    L.append(f'; @launch grid=(256,1,1) block=(320,1,1) lds={L_END}')
    L.append('.amdgcn_target "amdgcn-amd-amdhsa--gfx950"')
    L.append('.text'); L.append(f'.globl {name}_kernel'); L.append('.p2align 8')
    L.append(f'.type {name}_kernel,@function'); lab(f'{name}_kernel')
    if stamps:
        for i in range(8): a(f's_mov_b32 s{84+2*i}, 0')
    stamp(0)
    a('s_cmp_ge_u32 s2, 256')
    a('s_cbranch_scc1 L_end')
    a('s_load_dwordx16 s[16:31], s[0:1], 0')
    a('s_load_dwordx8 s[32:39], s[0:1], 64')
    a('s_load_dwordx2 s[40:41], s[0:1], 96')
    a('v_lshrrev_b32 v2, 6, v0')
    a('v_and_b32 v1, 63, v0')
    a('v_readfirstlane_b32 s3, v2')
    a('s_lshr_b32 s4, s2, 4')
    a('s_and_b32 s5, s2, 15')
    a('s_and_b32 s6, s2, 7')
    a('s_lshr_b32 s7, s2, 3')
    a('s_mul_i32 s8, s6, 28'); a('s_add_u32 s8, s8, s7')
    a('s_mul_i32 s9, s8, 9363'); a('s_lshr_b32 s9, s9, 16')
    a('s_mul_i32 s10, s9, 7'); a('s_sub_u32 s10, s8, s10')
    a('s_cmp_eq_u32 s3, 4')
    a('s_cbranch_scc1 L_service')

    c('================= streaming waves =================')
    a('v_bfe_u32 v44, v1, 2, 2'); a('v_lshlrev_b32 v2, 9, v44')
    a('v_lshrrev_b32 v45, 4, v1'); a('v_lshl_add_u32 v2, v45, 6, v2')
    a('v_and_b32 v44, 3, v1'); a('v_lshl_add_u32 v2, v44, 4, v2')
    a('v_lshlrev_b32 v3, 9, v45'); a('v_and_b32 v44, 15, v1'); a('v_lshl_add_u32 v3, v44, 4, v3')
    a('s_lshl_b32 s11, s4, 23')
    a('v_add_u32 v2, s11, v2'); a('v_add_u32 v3, s11, v3')
    a('s_lshl_b32 s44, s5, 2'); a('s_add_u32 s44, s44, s3'); a('s_lshl_b32 s44, s44, 12')
    a(f's_mul_i32 s11, s4, {rot}'); a('s_add_u32 s44, s44, s11'); a('s_and_b32 s44, s44, 0x7fffff')
    a('s_waitcnt lgkmcnt(0)')
    srd(48, 18, 1 << 27); srd(52, 20, 1 << 27)
    if bar1: a('s_barrier')
    RING = 88
    NL = 256
    def issue(i):
        r = RING + 4 * (i % R)
        isK = i < 128
        j = i % 4
        a(f'buffer_load_dwordx4 v[{r}:{r+3}], v{2 if isK else 3}, s[{48 if isK else 52}:{51 if isK else 55}], s44 offen offset:{(j>>1)*2048 + (j&1)*256} {sflag}')
        if j == 3:
            a('s_add_u32 s44, s44, 0x40000'); a('s_and_b32 s44, s44, 0x7fffff')
    def slot(i):
        r = RING + 4 * (i % R); return f'v[{r}:{r+3}]'
    def setup_item():
        c('--- one-time setup (runs while first loads are in flight)')
        srd(56, 40, WS_STAMP + 0x20000); srd(60, 24, 4096 * 896)
        a('v_and_b32 v44, 1, v1'); a('v_lshlrev_b32 v44, 4, v44'); a('v_mov_b32 v45, 0xffff'); a('v_lshlrev_b32 v45, v44, v45')
        a('v_bfe_u32 v44, v1, 1, 2')
        for r in range(4):
            a(f'v_cmp_eq_u32 vcc, {r}, v44'); a('s_nop 1'); a(f'v_cndmask_b32 v{4+r}, 0, v45, vcc')
        for r in range(24, 32): a(f'v_mov_b32 v{r}, 0')
        a('v_mov_b32 v46, 0xff800000'); a('v_mov_b32 v47, 0')
        a('v_bfe_u32 v44, v1, 3, 1'); a('v_lshlrev_b32 v80, 9, v44')
        a('v_lshrrev_b32 v44, 4, v1'); a('v_lshl_add_u32 v80, v44, 6, v80')
        a('v_and_b32 v44, 3, v1'); a('v_lshl_add_u32 v80, v44, 4, v80')
        a('s_lshr_b32 s12, s3, 1'); a('s_and_b32 s13, s3, 1')
        a('s_lshl_b32 s11, s9, 1'); a('s_add_u32 s14, s11, s12')
        a(f's_mul_i32 s11, s14, {64*896}')
        a('s_lshl_b32 s15, s10, 1'); a('s_add_u32 s15, s15, s13')
        a('s_lshl_b32 s42, s15, 6'); a('s_add_u32 s11, s11, s42')
        a('s_cmp_lt_u32 s7, 28'); a('s_cselect_b32 s11, s11, 0x40000000')
        a('v_lshrrev_b32 v44, 2, v1'); a('v_mul_u32_u24 v81, 896, v44')
        a('v_and_b32 v44, 3, v1'); a('v_lshl_add_u32 v81, v44, 4, v81'); a('v_add_u32 v81, s11, v81')
        a('s_mov_b32 s43, 0x3db8aa3b')
    def qload_item():
        c('--- wait for q')
        stamp(1)
        a('s_barrier')
        stamp(2)
        a('v_and_b32 v44, 4, v1'); a('v_cmp_ne_u32 vcc, 0, v44')
        a(f'ds_read_b128 v[8:11], v80 offset:{L_Q}')
        a(f'ds_read_b128 v[12:15], v80 offset:{L_Q+256}')
        a('s_waitcnt lgkmcnt(0)')
        for r in range(8): a(f'v_cndmask_b32 v{16+r}, 0, v{8+r}, vcc')
        for r in range(8): a(f'v_cndmask_b32 v{8+r}, v{8+r}, 0, vcc')
        a('s_nop 1')
    def kstep(k):
        i = 4 * k
        a(f'v_mfma_f32_16x16x32_bf16 v[32:35], {slot(i)}, v[8:11], 0')
        a(f'v_mfma_f32_16x16x32_bf16 v[32:35], {slot(i+1)}, v[12:15], v[32:35]')
        a(f'v_mfma_f32_16x16x32_bf16 v[32:35], {slot(i+2)}, v[16:19], v[32:35]')
        a(f'v_mfma_f32_16x16x32_bf16 v[32:35], {slot(i+3)}, v[20:23], v[32:35]')
        a('s_nop 7')
        a(f'v_mov_b32_dpp v44, v32 quad_perm:[0,0,0,0] {DPP}')
        a(f'v_mov_b32_dpp v45, v34 quad_perm:[2,2,2,2] {DPP}')
        a('s_nop 0')
        a(f'v_add_f32_dpp v44, v33, v44 quad_perm:[1,1,1,1] {DPP}')
        a(f'v_add_f32_dpp v45, v35, v45 quad_perm:[3,3,3,3] {DPP}')
        a(f'v_add_f32 v{48+k}, v44, v45')
        a(f'v_max_f32 v46, v46, v{48+k}')
    def xreduce(reg, op):
        a('s_nop 1')
        a(f'v_{op}_f32_dpp v{reg}, v{reg}, v{reg} row_half_mirror {DPP}')
        a(f'v_mov_b32 v44, v{reg}'); a('s_nop 1')
        a(f'v_permlane16_swap_b32 v44, v{reg}'); a('s_nop 1')
        a(f'v_{op}_f32 v{reg}, v44, v{reg}')
        a(f'v_mov_b32 v44, v{reg}'); a('s_nop 1')
        a(f'v_permlane32_swap_b32 v44, v{reg}'); a('s_nop 1')
        a(f'v_{op}_f32 v{reg}, v44, v{reg}')
    def maxred():
        stamp(3)
        xreduce(46, 'max')
        a('v_mul_f32 v46, s43, v46')
    def expchunk(k0, n):
        for k in range(k0, k0 + n): a(f'v_fma_f32 v{48+k}, v{48+k}, s43, -v46')
        for k in range(k0, k0 + n): a(f'v_exp_f32 v{48+k}, v{48+k}')
        a('s_nop 0')
        for k in range(k0, k0 + n):
            a(f'v_add_f32 v47, v47, v{48+k}')
            a(f'v_cvt_pk_bf16_f32 v{48+k}, v{48+k}, v{48+k}')
    def lred():
        xreduce(47, 'add')
        a('v_bfe_u32 v44, v1, 3, 1'); a('v_lshlrev_b32 v44, 5, v44')
        a('s_lshl_b32 s11, s3, 3'); a('v_add_u32 v44, s11, v44')
        a(f'ds_write_b64 v44, v[46:47] offset:{L_ST}')
    def vprep(k):
        p = 48 + k
        a(f'v_and_b32 v36, v{p}, v4'); a(f'v_and_b32 v37, v{p}, v5')
        a(f'v_and_b32_dpp v38, v{p}, v6 row_half_mirror {DPP}'); a(f'v_and_b32_dpp v39, v{p}, v7 row_half_mirror {DPP}')
        a(f'v_and_b32_dpp v40, v{p}, v4 row_half_mirror {DPP}'); a(f'v_and_b32_dpp v41, v{p}, v5 row_half_mirror {DPP}')
        a(f'v_and_b32 v42, v{p}, v6'); a(f'v_and_b32 v43, v{p}, v7')
        a('s_nop 1')
    def vmfma(k, j):
        i = 128 + 4 * k + j
        A = 'v[36:39]' if j < 2 else 'v[40:43]'
        acc = 'v[24:27]' if j % 2 == 0 else 'v[28:31]'
        a(f'v_mfma_f32_16x16x32_bf16 {acc}, {A}, {slot(i)}, {acc}')
    def vstep(k):
        vprep(k)
        for j in range(4): vmfma(k, j)
    items = []
    for k in range(32): items.append((4*k+4, 4*k+4, (lambda k=k: kstep(k))))
    items.append((128, 128, maxred))
    for k0 in range(0, 32, 8): items.append((128, 128, (lambda k0=k0: expchunk(k0, 8))))
    items.append((128, 128, lred))
    for k in range(32): items.append((128+4*k+4, 128+4*k+4, ('v', k)))
    def run(it):
        if isinstance(it[2], tuple): vstep(it[2][1])
        else: it[2]()
    nxt = 0; freed = 0; arrived = 0
    for i in range(NL):
        if i >= D:
            a(f's_waitcnt vmcnt({D-1})'); arrived = i - (D - 1)
        if i == R: qload_item()
        while i - R >= freed:
            assert items[nxt][0] <= arrived
            run(items[nxt]); freed = items[nxt][1]; nxt += 1
        issue(i)
        if i == D - 1: setup_item()
        if i >= R and i < NL - 1 and items[nxt][0] <= arrived:
            run(items[nxt]); freed = items[nxt][1]; nxt += 1
    c('--- wo tile DMA (4 x 1KB)')
    a(f's_lshl_b32 s11, s3, 12'); a(f's_add_u32 s11, s11, {L_WO}')
    for t in range(4):
        a('s_mov_b32 m0, s11')
        a(f's_mov_b32 s42, {t*16*896}')
        a(f'buffer_load_dwordx4 v81, s[60:63], s42 offen {wflag} lds')
        if t < 3: a('s_add_u32 s11, s11, 1024')
    total = NL + 4
    c('--- precompute tail addresses')
    a('v_lshrrev_b32 v44, 5, v1'); a('v_lshlrev_b32 v82, 10, v44')
    a('v_and_b32 v44, 15, v1'); a('v_lshl_add_u32 v82, v44, 5, v82')
    a('v_bfe_u32 v44, v1, 4, 1'); a('v_lshl_add_u32 v82, v44, 4, v82')
    a('s_lshl_b32 s11, s3, 11'); a('v_add_u32 v82, s11, v82')
    a('s_lshl_b32 s11, s3, 9'); a('v_lshlrev_b32 v83, 3, v1'); a('v_add_u32 v83, s11, v83')
    a('s_lshl_b32 s11, s4, 1'); a('s_add_u32 s11, s11, s12'); a('s_lshl_b32 s11, s11, 4'); a('s_add_u32 s11, s11, s5')
    a('s_lshl_b32 s11, s11, 9'); a('s_lshl_b32 s42, s13, 8'); a('s_add_u32 s11, s11, s42'); a(f's_add_u32 s11, s11, {WS_P1}')
    a('v_lshlrev_b32 v84, 2, v1'); a('v_add_u32 v84, s11, v84')
    a('s_lshr_b32 s11, s14, 2'); a('s_lshl_b32 s11, s11, 13'); a('s_and_b32 s42, s14, 3'); a('s_lshl_b32 s42, s42, 7')
    a('s_add_u32 s11, s11, s42'); a(f's_add_u32 s11, s11, {WS_P1}')
    a('v_and_b32 v44, 15, v1'); a('v_lshlrev_b32 v85, 9, v44'); a('v_lshrrev_b32 v44, 4, v1'); a('v_lshl_add_u32 v85, v44, 4, v85')
    a('v_add_u32 v85, s11, v85')
    a('v_lshrrev_b32 v44, 4, v1'); a('v_lshlrev_b32 v86, 9, v44'); a('v_bfe_u32 v44, v1, 2, 2'); a('v_lshl_add_u32 v86, v44, 6, v86')
    a('v_and_b32 v44, 3, v1'); a('v_lshl_add_u32 v86, v44, 3, v86')
    a('s_lshl_b32 s11, s3, 12'); a('v_add_u32 v86, s11, v86')
    a('v_lshrrev_b32 v44, 5, v1'); a('v_mul_u32_u24 v87, 112, v44'); a('v_bfe_u32 v44, v1, 2, 3'); a('v_add_u32 v87, v87, v44')
    a('v_lshlrev_b32 v87, 10, v87')
    a('s_lshl_b32 s11, s15, 13'); a('s_lshl_b32 s42, s14, 4'); a('s_add_u32 s11, s11, s42'); a(f's_add_u32 s11, s11, {WS_P2}')
    a('v_add_u32 v87, s11, v87')
    a('v_lshrrev_b32 v44, 5, v1'); a('v_lshlrev_b32 v80, 8, v44'); a('v_and_b32 v44, 31, v1'); a('v_lshl_add_u32 v80, v44, 2, v80')
    a('s_lshl_b32 s11, s13, 7'); a('v_add_u32 v80, s11, v80')
    a('s_lshl_b32 s11, s12, 4'); a('v_mov_b32 v81, s11')
    a('s_mov_b32 s46, 0x11111111'); a('s_mov_b32 s47, 0x11111111')
    a('s_mov_b32 s45, 0x20000')
    while nxt < len(items):
        it = items[nxt]; k = it[2][1]
        vprep(k)
        for j in range(4):
            need = 128 + 4 * k + j + 1
            if need > arrived:
                a(f's_waitcnt vmcnt({total - need})'); arrived = need
            vmfma(k, j)
        nxt += 1
    stamp(4)
    c('--- workgroup combine')
    a('s_nop 6')
    a(f'ds_write_b128 v82, v[24:27] offset:{L_ACC}')
    a(f'ds_write_b128 v82, v[28:31] offset:{L_ACC+512}')
    a('s_waitcnt lgkmcnt(0)')
    a('s_barrier')
    a(f'ds_read_b128 v[32:35], v81 offset:{L_F}')
    for w in range(4): a(f'ds_read_b64 v[{36+2*w}:{37+2*w}], v83 offset:{L_ACC+2048*w}')
    a('s_waitcnt lgkmcnt(0)')
    a('v_mul_f32 v44, v32, v36'); a('v_mul_f32 v45, v32, v37')
    for w in range(1, 4):
        a(f'v_fmac_f32 v44, v{32+w}, v{36+2*w}'); a(f'v_fmac_f32 v45, v{32+w}, v{37+2*w}')
    a('v_cvt_pk_bf16_f32 v24, v44, v45')
    a('v_min_u32 v24, -2, v24')
    a('s_nop 1')
    for r in range(1, 4): a(f'v_mov_b32_dpp v{24+r}, v24 quad_perm:[{r},{r},{r},{r}] {DPP}')
    a('s_mov_b64 exec, s[46:47]')
    a('buffer_store_dwordx4 v[24:27], v84, s[56:59], 0 offen sc1')
    a('s_mov_b64 exec, -1')
    stamp(5)
    a('s_cmp_ge_u32 s7, 28')
    a('s_cbranch_scc1 L_stream_done')
    c('--- stage 2')
    a('s_waitcnt vmcnt(1)')
    for t in range(2):
        for ct in range(2):
            r = 48 + 8 * t + 4 * ct
            a(f'ds_read_b64_tr_b16 v[{r}:{r+1}], v86 offset:{L_WO + t*2048 + ct*32}')
            a(f'ds_read_b64_tr_b16 v[{r+2}:{r+3}], v86 offset:{L_WO + t*2048 + ct*32 + 256}')
    a(f'ds_read_b32 v47, v80 offset:{L_GL}')
    a(f's_mov_b32 s11, {spin}')
    lab('L_poll_p1')
    a('buffer_load_dwordx4 v[64:67], v85, s[56:59], 0 offen sc1')
    a('buffer_load_dwordx4 v[68:71], v85, s[56:59], 0 offen offset:64 sc1')
    a('buffer_load_dwordx4 v[72:75], v85, s[56:59], s45 offen sc1')
    a('buffer_load_dwordx4 v[76:79], v85, s[56:59], s45 offen offset:64 sc1')
    a('s_sub_u32 s11, s11, 1')
    a('s_cbranch_scc1 L_p1_ok')
    a('s_waitcnt vmcnt(3)')
    a('v_max3_u32 v44, v64, v65, v66')
    a('s_waitcnt vmcnt(2)')
    a('v_max3_u32 v44, v44, v67, v68'); a('v_max3_u32 v45, v69, v70, v71')
    a('s_waitcnt vmcnt(1)')
    a('v_max3_u32 v44, v44, v72, v73'); a('v_max3_u32 v45, v45, v74, v75')
    a('s_waitcnt vmcnt(0)')
    a('v_max3_u32 v44, v44, v76, v77'); a('v_max3_u32 v45, v45, v78, v79')
    a('v_max_u32 v44, v44, v45')
    a('v_cmp_eq_u32 vcc, -1, v44')
    a('s_cbranch_vccnz L_poll_p1')
    lab('L_p1_ok')
    a('s_waitcnt vmcnt(0) lgkmcnt(0)')
    stamp(6)
    for t in range(2):
        for b in range(2):
            for ct in range(2):
                d = 8 + 8 * b + 4 * ct; A = 64 + 8 * b + 4 * t; B = 48 + 8 * t + 4 * ct
                a(f'v_mfma_f32_16x16x32_bf16 v[{d}:{d+3}], v[{A}:{A+3}], v[{B}:{B+3}], {"0" if t == 0 else f"v[{d}:{d+3}]"}')
    a('s_cmp_eq_u32 s12, 0'); a('s_cselect_b32 s11, 1.0, 0')
    a('s_nop 3')
    for q in range(4):
        d = 8 + 4 * q
        if q == 3: a('s_nop 1')
        a(f'v_add_f32 v{d}, v{d}, v{d+1}'); a(f'v_add_f32 v{d+2}, v{d+2}, v{d+3}')
    for q in range(4):
        d = 8 + 4 * q
        a(f'v_add_f32 v{d}, v{d}, v{d+2}')
    a('s_nop 1')
    a('v_permlane32_swap_b32 v8, v16'); a('v_permlane32_swap_b32 v12, v20')
    a('s_nop 1')
    a('v_add_f32 v8, v8, v16'); a('v_add_f32 v12, v12, v20')
    a('s_nop 1')
    a('v_permlane16_swap_b32 v8, v12')
    a('s_nop 1')
    a('v_add_f32 v8, v8, v12')
    a('v_fmac_f32 v8, s11, v47')
    a('v_min_u32 v8, -2, v8')
    a('s_nop 1')
    for r in range(1, 4): a(f'v_mov_b32_dpp v{8+r}, v8 quad_perm:[{r},{r},{r},{r}] {DPP}')
    a('s_mov_b64 exec, s[46:47]')
    a('buffer_store_dwordx4 v[8:11], v87, s[56:59], 0 offen sc1')
    a('s_mov_b64 exec, -1')
    lab('L_stream_done')
    if stamps:
        a('s_waitcnt vmcnt(0)')
        stamp(7)
    stamp_flush('str')
    a('s_endpgm')

    lab('L_service')
    c('================= service wave =================')
    a('v_lshlrev_b32 v2, 4, v1')
    a('v_lshrrev_b32 v3, 1, v1'); a('v_lshlrev_b32 v3, 13, v3'); a('v_and_b32 v4, 1, v1'); a('v_lshl_add_u32 v3, v4, 4, v3')
    a('s_lshl_b32 s11, s6, 5'); a('s_add_u32 s11, s11, s7'); a('s_lshl_b32 s12, s11, 5')
    a('v_add_u32 v3, s12, v3')
    a(f's_mov_b32 m0, {L_X}')
    a('s_waitcnt lgkmcnt(0)')
    a('s_load_dword s46, s[40:41], 0')
    srd(48, 16, 1792); srd(52, 22, 448 * 8192)
    a('buffer_load_dwordx4 v2, s[48:51], 0 offen lds')
    a('buffer_load_dwordx4 v2, s[48:51], 0 offen offset:1024 lds')
    for i in range(14):
        a(f's_mov_b32 m0, {L_WQ + i*1024}')
        a(f's_mov_b32 s12, {i*32*8192}')
        a(f'buffer_load_dwordx4 v3, s[52:55], s12 offen {wflag} lds')
    if bar1: a('s_barrier')
    srd(56, 40, WS_STAMP + 0x20000)
    c('--- resets of part1 / part2 (1KB each per workgroup) and LDS clears')
    for r in range(4): a(f'v_mov_b32 v{120+r}, -1')
    a('s_lshl_b32 s12, s2, 10'); a('v_add_u32 v4, s12, v2')
    a(f's_mov_b32 s12, {WS_P1}'); a(f's_mov_b32 s13, {WS_P2}')
    a('buffer_store_dwordx4 v[120:123], v4, s[56:59], s12 offen sc1')
    a('buffer_store_dwordx4 v[120:123], v4, s[56:59], s13 offen sc1')
    srd(60, 34, 896)
    a(f's_mov_b32 m0, {L_GW}')
    a('v_mov_b32 v124, 0'); a('v_mov_b32 v125, 0')
    a('buffer_load_dwordx4 v2, s[60:63], 0 offen lds')
    a('v_lshlrev_b32 v5, 3, v1')
    a(f'ds_write_b64 v5, v[124:125] offset:{L_ST}')
    a(f'ds_write_b64 v5, v[124:125] offset:{L_GL}')
    a('v_bfe_u32 v4, v1, 2, 1'); a('v_mul_u32_u24 v6, 896, v4'); a('v_lshrrev_b32 v4, 4, v1'); a('v_lshl_add_u32 v6, v4, 4, v6')
    a('v_lshlrev_b32 v7, 8, v4'); a('v_and_b32 v5, 15, v1'); a('v_lshl_add_u32 v7, v5, 3, v7')
    a('v_bfe_u32 v4, v1, 4, 1'); a('v_lshlrev_b32 v126, 14, v4'); a('v_lshl_add_u32 v126, v5, 2, v126')
    a('s_lshl_b32 s12, s6, 11'); a('s_lshl_b32 s13, s7, 6'); a('s_add_u32 s12, s12, s13'); a(f's_add_u32 s12, s12, {WS_QG}')
    a('v_add_u32 v126, s12, v126')
    a('s_lshl_b32 s12, s4, 11'); a(f's_add_u32 s12, s12, {WS_QG}'); a('v_lshlrev_b32 v127, 5, v1'); a('v_add_u32 v127, s12, v127')
    a('s_waitcnt lgkmcnt(0)')
    a('s_mul_i32 s46, s46, 1664525'); a('s_add_u32 s46, s46, 1013904223')
    a('s_waitcnt vmcnt(17)')
    for t in range(14): a(f'ds_read_b128 v[{8+4*t}:{11+4*t}], v6 offset:{L_X + 64*t}')
    a('s_waitcnt vmcnt(3)')
    stamp(1)
    for t in range(14):
        a(f'ds_read_b64_tr_b16 v[{64+4*t}:{65+4*t}], v7 offset:{L_WQ + 1024*t}')
        a(f'ds_read_b64_tr_b16 v[{66+4*t}:{67+4*t}], v7 offset:{L_WQ + 1024*t + 128}')
    a('s_waitcnt lgkmcnt(0)')
    def chain(dreg):
        for t in range(14):
            a(f'v_mfma_f32_16x16x32_bf16 v[{dreg}:{dreg+3}], v[{8+4*t}:{11+4*t}], v[{64+4*t}:{67+4*t}], {"0" if t == 0 else f"v[{dreg}:{dreg+3}]"}')
        a('s_nop 7')
    chain(120)
    a(f'v_mov_b32_dpp v121, v120 quad_perm:[1,0,3,2] {DPP}')
    a('v_cvt_pk_bf16_f32 v122, v120, v121')
    a('v_mov_b32 v123, s46')
    a('s_mov_b32 exec_lo, 0x55555555'); a('s_mov_b32 exec_hi, 0')
    a('buffer_store_dwordx2 v[122:123], v126, s[56:59], 0 offen sc1')
    a('s_mov_b64 exec, -1')
    stamp(2)
    a(f's_mov_b32 s11, {spin}')
    lab('L_poll_q')
    a('buffer_load_dwordx4 v[64:67], v127, s[56:59], 0 offen sc1')
    a('buffer_load_dwordx4 v[68:71], v127, s[56:59], 0 offen offset:16 sc1')
    a('s_sub_u32 s11, s11, 1')
    a('s_cbranch_scc1 L_q_ok')
    a('s_waitcnt vmcnt(0)')
    def tagcheck(regs):
        a(f'v_xor_b32 v4, s46, v{regs[0]}')
        for r in regs[1:]:
            a(f'v_xor_b32 v5, s46, v{r}'); a('v_or_b32 v4, v4, v5')
        a('v_cmp_ne_u32 vcc, 0, v4')
    tagcheck([65, 67, 69, 71])
    a('s_cbranch_vccnz L_poll_q')
    lab('L_q_ok')
    a('s_waitcnt vmcnt(0)')
    a('v_mov_b32 v65, v66'); a('v_mov_b32 v66, v68'); a('v_mov_b32 v67, v70')
    a(f'ds_write_b128 v2, v[64:67] offset:{L_Q}')
    a('s_waitcnt lgkmcnt(0)')
    stamp(3)
    a('s_barrier')
    c('--- arrival counter (resets are complete: vmcnt(0) passed above)')
    srd(64, 38, 256)
    a('v_mov_b32 v4, 1'); a('v_mov_b32 v5, 0')
    a('s_mov_b64 exec, 1')
    a('buffer_atomic_add v4, v5, s[64:67], 0 offen sc1')
    a('s_mov_b64 exec, -1')
    c('--- mix gate g_b : lane group (l>>4)&1 = b')
    a('v_lshrrev_b32 v4, 4, v1'); a('v_lshlrev_b32 v4, 4, v4')
    for t in range(14): a(f'ds_read_b128 v[{64+4*t}:{67+4*t}], v4 offset:{L_GW + 64*t}')
    a('s_waitcnt lgkmcnt(0)')
    chain(120)
    def sigmoid(dst, src):
        a(f'v_mul_f32 v{dst}, 0xbfb8aa3b, v{src}'); a(f'v_exp_f32 v{dst}, v{dst}'); a('s_nop 0')
        a(f'v_add_f32 v{dst}, 1.0, v{dst}'); a(f'v_rcp_f32 v{dst}, v{dst}'); a('s_nop 0')
    sigmoid(128, 120)
    a('v_sub_f32 v129, 1.0, v128')
    a('s_lshr_b32 s12, s4, 3'); a('s_lshl_b32 s12, s12, 4')
    a('s_nop 0')
    a('v_readlane_b32 s47, v128, s12')
    a('s_cmp_ge_u32 s7, 28')
    a('s_cbranch_scc1 L_glu_done')
    c('--- GLU stage 1')
    srd(48, 28, 448 * 3584); srd(52, 30, 448 * 3584)
    a('v_mul_u32_u24 v3, 3584, v1'); a('s_lshl_b32 s12, s8, 4'); a('v_add_u32 v3, s12, v3')
    for i in range(14):
        a(f's_mov_b32 m0, {L_G1 + i*1024}')
        a(f's_mov_b32 s12, {(i%7)*64*3584}')
        a(f'buffer_load_dwordx4 v3, s[{48 if i < 7 else 52}:{51 if i < 7 else 55}], s12 offen {wflag} lds')
        a('s_waitcnt vmcnt(2)')
    srd(48, 32, 1792 * 896)
    a('v_lshrrev_b32 v4, 3, v1'); a('v_mul_u32_u24 v3, 896, v4'); a('v_and_b32 v4, 7, v1'); a('v_lshl_add_u32 v3, v4, 4, v3')
    a(f's_mul_i32 s12, s9, {64*896}'); a('s_lshl_b32 s13, s10, 7'); a('s_add_u32 s12, s12, s13'); a('v_add_u32 v3, s12, v3')
    a('v_lshrrev_b32 v4, 4, v1'); a('v_lshlrev_b32 v7, 7, v4'); a('v_bfe_u32 v4, v1, 2, 2'); a('v_lshl_add_u32 v7, v4, 4, v7')
    a('v_and_b32 v4, 1, v1'); a('v_lshl_add_u32 v7, v4, 3, v7'); a('v_bfe_u32 v4, v1, 1, 1'); a('v_mul_u32_u24 v4, 7168, v4'); a('v_add_u32 v7, v7, v4')
    a('s_waitcnt vmcnt(0)')
    for i in range(8):
        a(f's_mov_b32 m0, {L_WD + i*1024}')
        a(f's_mov_b32 s12, {i*8*896}')
        a(f'buffer_load_dwordx4 v3, s[48:51], s12 offen {wflag} lds')
    for t in range(14):
        a(f'ds_read_b64_tr_b16 v[{64+4*t}:{65+4*t}], v7 offset:{L_G1 + 512*t}')
        a(f'ds_read_b64_tr_b16 v[{66+4*t}:{67+4*t}], v7 offset:{L_G1 + 512*t + 64}')
    a('s_waitcnt lgkmcnt(0)')
    chain(120)
    a(f'v_mov_b32_dpp v121, v120 row_ror:8 {DPP}')
    sigmoid(122, 120)
    a('v_mul_f32 v122, v122, v121')
    a('s_nop 1')
    a(f'v_mov_b32_dpp v121, v122 quad_perm:[1,0,3,2] {DPP}')
    a('v_cvt_pk_bf16_f32 v122, v122, v121')
    a('v_mov_b32 v123, s46')
    a('v_bfe_u32 v4, v1, 4, 1'); a('v_mul_u32_u24 v5, 7168, v4'); a('v_and_b32 v4, 15, v1'); a('v_lshl_add_u32 v5, v4, 2, v5')
    a('s_lshl_b32 s12, s8, 5'); a(f's_add_u32 s12, s12, {WS_HG}'); a('v_add_u32 v5, s12, v5')
    a('s_mov_b32 exec_lo, 0x00550055'); a('s_mov_b32 exec_hi, 0')
    a('buffer_store_dwordx2 v[122:123], v5, s[56:59], 0 offen sc1')
    a('s_mov_b64 exec, -1')
    a('s_cmp_ge_u32 s9, 28')
    a('s_cbranch_scc1 L_glu_done')
    c('--- GLU stage 2')
    a('v_bfe_u32 v4, v1, 2, 1'); a('v_mul_u32_u24 v6, 7168, v4'); a('v_lshrrev_b32 v4, 4, v1'); a('v_lshl_add_u32 v6, v4, 5, v6')
    a('s_lshl_b32 s12, s9, 8'); a(f's_add_u32 s12, s12, {WS_HG}'); a('v_add_u32 v6, s12, v6')
    a('v_lshlrev_b32 v7, 10, v4'); a('v_bfe_u32 v4, v1, 2, 2'); a('v_lshl_add_u32 v7, v4, 7, v7')
    a('v_and_b32 v4, 3, v1'); a('v_lshl_add_u32 v7, v4, 3, v7')
    a(f's_mov_b32 s11, {spin}')
    lab('L_poll_h')
    a('s_sleep 8')
    a('buffer_load_dwordx4 v[8:11], v6, s[56:59], 0 offen sc1')
    a('buffer_load_dwordx4 v[12:15], v6, s[56:59], 0 offen offset:16 sc1')
    a('buffer_load_dwordx4 v[16:19], v6, s[56:59], 0 offen offset:128 sc1')
    a('buffer_load_dwordx4 v[20:23], v6, s[56:59], 0 offen offset:144 sc1')
    a('s_sub_u32 s11, s11, 1')
    a('s_cbranch_scc1 L_h_ok')
    a('s_waitcnt vmcnt(0)')
    tagcheck([9, 11, 13, 15, 17, 19, 21, 23])
    a('s_cbranch_vccnz L_poll_h')
    lab('L_h_ok')
    a('s_waitcnt vmcnt(0)')
    a('v_mov_b32 v9, v10'); a('v_mov_b32 v10, v12'); a('v_mov_b32 v11, v14')
    a('v_mov_b32 v17, v18'); a('v_mov_b32 v18, v20'); a('v_mov_b32 v19, v22')
    for t in range(2):
        for ct in range(4):
            r = 64 + 16 * t + 4 * ct
            a(f'ds_read_b64_tr_b16 v[{r}:{r+1}], v7 offset:{L_WD + t*4096 + ct*32}')
            a(f'ds_read_b64_tr_b16 v[{r+2}:{r+3}], v7 offset:{L_WD + t*4096 + ct*32 + 512}')
    a('s_waitcnt lgkmcnt(0)')
    for t in range(2):
        for ct in range(4):
            d = 24 + 4 * ct; B = 64 + 16 * t + 4 * ct; A = 8 + 8 * t
            a(f'v_mfma_f32_16x16x32_bf16 v[{d}:{d+3}], v[{A}:{A+3}], v[{B}:{B+3}], {"0" if t == 0 else f"v[{d}:{d+3}]"}')
    a('v_bfe_u32 v4, v1, 4, 1'); a('v_lshlrev_b32 v5, 8, v4'); a('v_and_b32 v4, 15, v1'); a('v_lshl_add_u32 v5, v4, 2, v5')
    a('s_nop 7')
    for ct in range(4):
        a(f'v_mul_f32 v{24+4*ct}, v129, v{24+4*ct}')
        a(f'ds_write_b32 v5, v{24+4*ct} offset:{L_GL + 64*ct}')
    lab('L_glu_done')
    stamp(4)
    c('--- softmax statistics: lane -> hd=(l>>4)&1, w=l&3')
    a('v_bfe_u32 v4, v1, 4, 1'); a('v_lshlrev_b32 v6, 5, v4'); a('v_and_b32 v5, 3, v1'); a('v_lshl_add_u32 v6, v5, 3, v6')
    a(f's_mov_b32 s11, {spin*4}')
    lab('L_poll_st')
    a('s_sleep 16')
    a(f'ds_read_b64 v[8:9], v6 offset:{L_ST}')
    a('s_sub_u32 s11, s11, 1')
    a('s_cbranch_scc1 L_st_ok')
    a('s_waitcnt lgkmcnt(0)')
    a('v_cmp_eq_u32 vcc, 0, v9')
    a('s_cbranch_vccnz L_poll_st')
    lab('L_st_ok')
    a('s_waitcnt lgkmcnt(0)')
    a(f'v_max_f32_dpp v12, v8, v8 quad_perm:[1,0,3,2] {DPP}'); a('s_nop 1')
    a(f'v_max_f32_dpp v12, v12, v12 quad_perm:[2,3,0,1] {DPP}')
    a('v_sub_f32 v14, v8, v12'); a('v_exp_f32 v14, v14'); a('s_nop 0'); a('v_mul_f32 v14, v14, v9'); a('s_nop 1')
    a(f'v_add_f32_dpp v14, v14, v14 quad_perm:[1,0,3,2] {DPP}'); a('s_nop 1')
    a(f'v_add_f32_dpp v14, v14, v14 quad_perm:[2,3,0,1] {DPP}')
    a('v_mov_b32 v13, s46'); a('v_mov_b32 v15, s46')
    a('v_lshlrev_b32 v5, 8, v4')
    a('s_lshl_b32 s12, s4, 9'); a(f's_add_u32 s12, s12, {WS_SG}'); a('v_add_u32 v5, s12, v5')
    a('s_lshl_b32 s13, s5, 4')
    a('s_mov_b32 exec_lo, 0x00010001'); a('s_mov_b32 exec_hi, 0')
    a('buffer_store_dwordx4 v[12:15], v5, s[56:59], s13 offen sc1')
    a('s_mov_b64 exec, -1')
    a('v_and_b32 v7, 15, v1'); a('v_lshl_add_u32 v7, v7, 4, v5')
    a(f's_mov_b32 s11, {spin}')
    lab('L_poll_sg')
    a('s_sleep 8')
    a('buffer_load_dwordx4 v[16:19], v7, s[56:59], 0 offen sc1')
    a('s_sub_u32 s11, s11, 1')
    a('s_cbranch_scc1 L_sg_ok')
    a('s_waitcnt vmcnt(0)')
    tagcheck([17, 19])
    a('s_cbranch_vccnz L_poll_sg')
    lab('L_sg_ok')
    a('s_waitcnt vmcnt(0)')
    a(f'v_max_f32_dpp v20, v16, v16 row_ror:8 {DPP}')
    for sh in (4, 2, 1):
        a('s_nop 1'); a(f'v_max_f32_dpp v20, v20, v20 row_ror:{sh} {DPP}')
    a('v_sub_f32 v21, v16, v20'); a('v_exp_f32 v21, v21'); a('s_nop 0'); a('v_mul_f32 v21, v21, v18')
    for sh in (8, 4, 2, 1):
        a('s_nop 1'); a(f'v_add_f32_dpp v21, v21, v21 row_ror:{sh} {DPP}')
    a('v_rcp_f32 v21, v21')
    a('v_sub_f32 v22, v8, v20'); a('v_exp_f32 v22, v22'); a('s_nop 0')
    a('v_mul_f32 v22, v22, v21'); a('v_mul_f32 v22, s47, v22')
    a('v_lshrrev_b32 v6, 1, v6')
    a(f'ds_write_b32 v6, v22 offset:{L_F}')
    c('--- all workgroups have reset their slots and read the epoch?')
    a('v_mov_b32 v5, 0')
    a(f's_mov_b32 s11, {spin}')
    lab('L_poll_cnt')
    a('buffer_load_dword v4, v5, s[64:67], 0 offen sc1')
    a('s_sub_u32 s11, s11, 1')
    a('s_cbranch_scc1 L_cnt_ok')
    a('s_waitcnt vmcnt(0)')
    a('v_cmp_gt_u32 vcc, 0x100, v4')
    a('s_cbranch_vccnz L_poll_cnt')
    lab('L_cnt_ok')
    a('s_cmp_lg_u32 s2, 0')
    a('s_cbranch_scc1 L_no_epoch')
    a('v_mov_b32 v6, s46')
    a('s_mov_b64 exec, 1')
    a('buffer_store_dword v6, v5, s[56:59], 0 offen sc1')
    a('s_mov_b64 exec, -1')
    lab('L_no_epoch')
    srd(48, 36, 1792)
    a('s_lshl_b32 s12, s8, 10'); a(f's_add_u32 s12, s12, {WS_P2}'); a('v_add_u32 v2, s12, v2')
    a('v_lshrrev_b32 v3, 4, v1'); a('v_lshlrev_b32 v3, 1, v3'); a('s_lshl_b32 s12, s8, 3'); a('v_add_u32 v3, s12, v3')
    a('s_waitcnt vmcnt(0) lgkmcnt(0)')
    stamp(5)
    a('s_barrier')
    a('s_cmp_ge_u32 s7, 28')
    a('s_cbranch_scc1 L_service_done')
    a(f's_mov_b32 s11, {spin}')
    lab('L_poll_p2')
    a('buffer_load_dwordx4 v[8:11], v2, s[56:59], 0 offen sc1')
    a('s_sub_u32 s11, s11, 1')
    a('s_cbranch_scc1 L_p2_ok')
    a('s_waitcnt vmcnt(0)')
    a('v_max3_u32 v4, v8, v9, v10'); a('v_max_u32 v4, v4, v11')
    a('v_cmp_eq_u32 vcc, -1, v4')
    a('s_cbranch_vccnz L_poll_p2')
    lab('L_p2_ok')
    a('s_waitcnt vmcnt(0)')
    stamp(6)
    a('v_permlane32_swap_b32 v8, v10'); a('v_permlane32_swap_b32 v9, v11')
    a('s_nop 1')
    a('v_add_f32 v8, v8, v10'); a('v_add_f32 v9, v9, v11')
    a('s_nop 1')
    a('v_permlane16_swap_b32 v8, v9')
    a('s_nop 1')
    a('v_add_f32 v8, v8, v9')
    for sh in (8, 4, 2, 1):
        a('s_nop 1'); a(f'v_add_f32_dpp v8, v8, v8 row_ror:{sh} {DPP}')
    a('v_cvt_pk_bf16_f32 v8, v8, v8')
    a('s_mov_b32 exec_lo, 0x00010001'); a('s_mov_b32 exec_hi, 0x00010001')
    a('buffer_store_short v8, v3, s[48:51], 0 offen')
    lab('L_service_done')
    if stamps:
        a('s_waitcnt vmcnt(0)')
        stamp(7)
    stamp_flush('svc')
    lab('L_end')
    a('s_endpgm')
    L.append('.section .rodata,"a"'); L.append('.p2align 6'); L.append(f'.amdhsa_kernel {name}_kernel')
    L.append('  .amdhsa_next_free_vgpr 256'); L.append('  .amdhsa_next_free_sgpr 102'); L.append('  .amdhsa_accum_offset 256')
    L.append('  .amdhsa_group_segment_fixed_size 0'); L.append('  .amdhsa_kernarg_size 104'); L.append('  .amdhsa_user_sgpr_count 2')
    L.append('  .amdhsa_user_sgpr_kernarg_segment_ptr 1'); L.append('  .amdhsa_system_sgpr_workgroup_id_x 1')
    L.append('  .amdhsa_float_denorm_mode_32 3')
    L.append('.end_amdhsa_kernel')
    return '\n'.join(L) + '\n'

if __name__ == '__main__':
    kw = json.loads(sys.argv[2]) if len(sys.argv) > 2 else {}
    open(sys.argv[1], 'w').write(gen(**kw))
```

```python
import sys, json
NAME = 'gated_mix__gqa_block_cached__glu_gated_glu__decode'
HEADER = open('cdna_kernels/' + NAME + '.s.ref').read().split('; Override launch')[0]

WS_EPOCH = 0
WS_SG    = 0x1000
WS_P2    = 0x10000
WS_GP    = 0x20000
WS_QP    = 0x40000
WS_P1    = 0x80000
WS_END   = 0xC0000
WS_STAMP = 0x100000
L_X   = 0x0000
L_Q   = 0x0800
L_ST  = 0x0C00
L_F   = 0x0C80
L_MODE= 0x0CC0
L_GL  = 0x0D00
L_GW  = 0x1000
L_S2  = 0x1400
L_WQ  = 0x2000
L_ACC = 0x2000
L_G1  = 0x6000
L_WD  = 0xA000
L_WO  = 0xC000
L_END = 0x10000

def gen(name=NAME, R=40, D=5, rot=15*262144, stamps=False, diag=None, spin=400000,
        qflag='nt', gflag='', oflag='', sflag='nt', qsleep=12, pg=14, wopos=0, Dend=0, nend=0,
        force_slow=False, p2poll='load', gsleep=40, ssleep=100, gstart=0):
    if diag: stamps = True
    L = []
    def a(s): L.append('    ' + s)
    def lab(s): L.append(s + ':')
    def c(s): L.append('    ; ' + s)
    def srd(d, p, n):
        a(f's_mov_b32 s{d}, s{p}'); a(f's_and_b32 s{d+1}, s{p+1}, 0xffff')
        a(f's_mov_b32 s{d+2}, {n}'); a(f's_mov_b32 s{d+3}, 0x20000')
    def stamp(i):
        if stamps: a(f's_memrealtime s[{84+2*i}:{85+2*i}]')
    uid = [0]
    def finish(kind):
        uid[0] += 1; u = uid[0]
        if stamps:
            a('s_waitcnt vmcnt(0)'); stamp(7); a('s_waitcnt lgkmcnt(0)')
            if diag:
                if diag[0] == kind:
                    i, sign = diag[1], diag[2]
                    a(f's_cmp_eq_u32 s{84+2*i}, 0'); a(f's_cbranch_scc1 L_dgx{u}')
                    a(f's_sub_u32 s82, s{84+2*i}, s84')
                    a(f's_mul_i32 s82, s82, {sign}'); a('s_add_u32 s82, s82, 10000')
                    lab(f'L_dg{u}')
                    a('s_sleep 4'); a('s_memrealtime s[80:81]'); a('s_waitcnt lgkmcnt(0)')
                    a('s_sub_u32 s83, s80, s84'); a('s_cmp_lt_u32 s83, s82'); a(f's_cbranch_scc1 L_dg{u}')
                    lab(f'L_dgx{u}')
            else:
                a('s_mov_b64 exec, 1')
                a('s_getreg_b32 s83, hwreg(HW_REG_XCC_ID, 0, 4)')
                for i in range(8): a(f'v_mov_b32 v{8+i}, s{84+2*i}')
                a('v_mov_b32 v16, s83')
                a('s_mul_i32 s82, s2, 5'); a('s_add_u32 s82, s82, s3'); a('s_lshl_b32 s82, s82, 6')
                a(f's_add_u32 s82, s82, {WS_STAMP}')
                a('v_mov_b32 v2, s82')
                a('buffer_store_dwordx4 v[8:11], v2, s[56:59], 0 offen')
                a('buffer_store_dwordx4 v[12:15], v2, s[56:59], 0 offen offset:16')
                a('buffer_store_dword v16, v2, s[56:59], 0 offen offset:32')
        a('s_endpgm')
    def mstore(instr, mode_sgpr):
        uid[0] += 1; u = uid[0]
        a(f's_cmp_lg_u32 s{mode_sgpr}, 0'); a(f's_cbranch_scc1 L_ms{u}')
        a(instr); a(f's_branch L_mx{u}')
        lab(f'L_ms{u}'); a(instr + ' sc1'); lab(f'L_mx{u}')
    DPP = 'row_mask:0xf bank_mask:0xf'
    WSZ = WS_STAMP + 0x20000 if stamps else WS_END
    MF = 'v_mfma_f32_16x16x32_bf16'
    def vr(r, n=4): return f'v[{r}:{r+n-1}]'

    L.append(HEADER.rstrip('\n'))
    L.append(f'; @launch grid=(256,1,1) block=(320,1,1) lds={L_END}')
    L.append('.amdgcn_target "amdgcn-amd-amdhsa--gfx950"')
    L.append('.text'); L.append(f'.globl {name}_kernel'); L.append('.p2align 8')
    L.append(f'.type {name}_kernel,@function'); lab(f'{name}_kernel')
    if stamps:
        for i in range(8): a(f's_mov_b32 s{84+2*i}, 0')
    stamp(0)
    a('s_cmp_ge_u32 s2, 256')
    a('s_cbranch_scc1 L_end')
    a('s_load_dwordx16 s[16:31], s[0:1], 0')
    a('s_load_dwordx8 s[32:39], s[0:1], 64')
    a('s_load_dwordx2 s[40:41], s[0:1], 96')
    a('v_lshrrev_b32 v2, 6, v0')
    a('v_and_b32 v1, 63, v0')
    a('v_readfirstlane_b32 s3, v2')
    a('s_and_b32 s6, s2, 7')
    a('s_lshr_b32 s7, s2, 3')
    a('s_lshr_b32 s8, s2, 7')
    a('s_and_b32 s5, s7, 15')
    a('s_cmp_ge_u32 s7, 14'); a('s_cselect_b32 s9, 1, 0')
    a('s_mul_i32 s10, s9, 14'); a('s_sub_u32 s10, s7, s10')
    a('s_cmp_eq_u32 s3, 4')
    a('s_cbranch_scc1 L_service')

    c('================= streaming waves =================')
    a('s_lshl_b32 s4, s8, 3'); a('s_or_b32 s4, s4, s6')
    a('v_bfe_u32 v44, v1, 2, 2'); a('v_lshlrev_b32 v2, 9, v44')
    a('v_lshrrev_b32 v45, 4, v1'); a('v_lshl_add_u32 v2, v45, 6, v2')
    a('v_and_b32 v44, 3, v1'); a('v_lshl_add_u32 v2, v44, 4, v2')
    a('s_lshl_b32 s11, s4, 23')
    a('v_add_u32 v2, s11, v2')
    a('s_lshl_b32 s44, s5, 2'); a('s_add_u32 s44, s44, s3'); a('s_lshl_b32 s44, s44, 12')
    a(f's_mul_i32 s12, s4, {rot}'); a('s_add_u32 s44, s44, s12'); a('s_and_b32 s44, s44, 0x7fffff')
    a('s_waitcnt lgkmcnt(0)')
    srd(48, 18, 1 << 27)
    RING = 88
    NL = 256
    def slot(i): return vr(RING + 4 * (i % R))
    def issue(i):
        isK = i < 128; j = i % 4
        a(f'buffer_load_dwordx4 {slot(i)}, v{2 if isK else 3}, s[{48 if isK else 52}:{51 if isK else 55}], s44 offen offset:{(j>>1)*2048 + (j&1)*256} {sflag}')
        if j == 3:
            a('s_add_u32 s44, s44, 0x40000'); a('s_and_b32 s44, s44, 0x7fffff')
    def wo_issue(t):
        a(f's_add_u32 m0, s13, {L_WO + t*1024}')
        a(f's_mov_b32 s42, {t*16*896}')
        a(f'buffer_load_dwordx4 v81, s[60:63], s42 offen {oflag} lds')
    def setup_a():
        c('--- one-time setup (runs while the first loads are in flight)')
        srd(52, 20, 1 << 27); srd(56, 40, WSZ); srd(60, 24, 4096 * 896)
        a('v_lshlrev_b32 v3, 9, v45'); a('v_and_b32 v44, 15, v1'); a('v_lshl_add_u32 v3, v44, 4, v3'); a('v_add_u32 v3, s11, v3')
        a('v_and_b32 v44, 1, v1'); a('v_lshlrev_b32 v44, 4, v44'); a('v_mov_b32 v45, 0xffff'); a('v_lshlrev_b32 v45, v44, v45')
        a('v_bfe_u32 v44, v1, 1, 2')
        for r in range(4):
            a(f'v_cmp_eq_u32 vcc, {r}, v44'); a('s_nop 1'); a(f'v_cndmask_b32 v{4+r}, 0, v45, vcc')
        for r in range(24, 32): a(f'v_mov_b32 v{r}, 0')
        a('v_mov_b32 v46, 0xff800000'); a('v_mov_b32 v47, 0')
        a('v_bfe_u32 v44, v1, 3, 1'); a('v_lshlrev_b32 v80, 9, v44')
        a('v_lshrrev_b32 v44, 4, v1'); a('v_lshl_add_u32 v80, v44, 6, v80')
        a('v_and_b32 v44, 3, v1'); a('v_lshl_add_u32 v80, v44, 4, v80')
        a('s_lshl_b32 s11, s6, 1'); a('s_add_u32 s14, s11, s9')
        a('s_lshl_b32 s11, s14, 2'); a('s_add_u32 s11, s11, s3'); a(f's_mul_i32 s11, s11, {64*896}')
        a('s_lshl_b32 s42, s10, 6'); a('s_add_u32 s11, s11, s42')
        a('s_cmp_lt_u32 s7, 28'); a('s_cselect_b32 s11, s11, 0x40000000')
        a('v_lshrrev_b32 v44, 2, v1'); a('v_mul_u32_u24 v81, 896, v44')
        a('v_and_b32 v44, 3, v1'); a('v_lshl_add_u32 v81, v44, 4, v81'); a('v_add_u32 v81, s11, v81')
        a('s_lshl_b32 s13, s3, 12')
        a('s_mov_b32 s43, 0x3db8aa3b')
    def setup_b():
        c('--- tail addresses')
        a('v_lshrrev_b32 v44, 5, v1'); a('v_lshlrev_b32 v82, 10, v44')
        a('v_and_b32 v44, 15, v1'); a('v_lshl_add_u32 v82, v44, 5, v82')
        a('v_bfe_u32 v44, v1, 4, 1'); a('v_lshl_add_u32 v82, v44, 4, v82')
        a('s_lshl_b32 s11, s3, 11'); a('v_add_u32 v82, s11, v82')
        a('s_lshl_b32 s11, s3, 9'); a('v_lshlrev_b32 v83, 3, v1'); a('v_add_u32 v83, s11, v83')
        a('s_lshl_b32 s11, s6, 1'); a('s_add_u32 s11, s11, s8'); a('s_lshl_b32 s11, s11, 14'); a('s_add_u32 s11, s11, s13')
        a('s_lshl_b32 s42, s5, 6'); a('s_add_u32 s11, s11, s42'); a(f's_add_u32 s11, s11, {WS_P1}')
        a('v_lshrrev_b32 v44, 4, v1'); a('v_lshlrev_b32 v84, 10, v44'); a('v_and_b32 v44, 15, v1'); a('v_lshl_add_u32 v84, v44, 2, v84')
        a('v_add_u32 v84, s11, v84')
        a('s_lshl_b32 s11, s6, 15'); a('s_lshl_b32 s42, s9, 13'); a('s_add_u32 s11, s11, s42')
        a('s_lshl_b32 s42, s3, 11'); a('s_add_u32 s11, s11, s42'); a(f's_add_u32 s11, s11, {WS_P1}')
        a('v_lshlrev_b32 v85, 6, v44'); a('v_lshrrev_b32 v44, 4, v1'); a('v_lshl_add_u32 v85, v44, 4, v85'); a('v_add_u32 v85, s11, v85')
        a('v_lshlrev_b32 v86, 9, v44'); a('v_bfe_u32 v44, v1, 2, 2'); a('v_lshl_add_u32 v86, v44, 6, v86')
        a('v_and_b32 v44, 3, v1'); a('v_lshl_add_u32 v86, v44, 3, v86'); a('v_add_u32 v86, s13, v86')
        a('s_lshl_b32 s11, s3, 2'); a('v_lshl_add_u32 v87, v1, 4, s11')
        a('s_mov_b32 s46, 0x11111111'); a('s_mov_b32 s47, 0x11111111')
        a('s_mov_b32 s45, 0x4000')
    def qload_item():
        c('--- wait for q')
        stamp(1)
        a('s_barrier')
        stamp(2)
        a('v_and_b32 v44, 4, v1'); a('v_cmp_ne_u32 vcc, 0, v44')
        a(f'ds_read_b128 v[8:11], v80 offset:{L_Q}')
        a(f'ds_read_b128 v[12:15], v80 offset:{L_Q+256}')
        a('v_mov_b32 v44, 0')
        a(f'ds_read_b64 v[44:45], v44 offset:{L_MODE}')
        a('s_lshr_b32 s11, s3, 1'); a('s_lshl_b32 s11, s11, 4'); a('v_mov_b32 v80, s11')
        a('s_waitcnt lgkmcnt(0)')
        a('v_readfirstlane_b32 s15, v44')
        a('v_readfirstlane_b32 s12, v45')
        for r in range(8): a(f'v_cndmask_b32 v{16+r}, 0, v{8+r}, vcc')
        for r in range(8): a(f'v_cndmask_b32 v{8+r}, v{8+r}, 0, vcc')
        a('s_nop 1')
    def kstep(k):
        i = 4 * k
        a(f'{MF} v[32:35], {slot(i)}, v[8:11], 0')
        a(f'{MF} v[32:35], {slot(i+1)}, v[12:15], v[32:35]')
        a(f'{MF} v[32:35], {slot(i+2)}, v[16:19], v[32:35]')
        a(f'{MF} v[32:35], {slot(i+3)}, v[20:23], v[32:35]')
        a('s_nop 7')
        a(f'v_mov_b32_dpp v44, v32 quad_perm:[0,0,0,0] {DPP}')
        a(f'v_mov_b32_dpp v45, v34 quad_perm:[2,2,2,2] {DPP}')
        a('s_nop 0')
        a(f'v_add_f32_dpp v44, v33, v44 quad_perm:[1,1,1,1] {DPP}')
        a(f'v_add_f32_dpp v45, v35, v45 quad_perm:[3,3,3,3] {DPP}')
        a(f'v_add_f32 v{48+k}, v44, v45')
        a(f'v_max_f32 v46, v46, v{48+k}')
    def xreduce(reg, op):
        a('s_nop 1')
        a(f'v_{op}_f32_dpp v{reg}, v{reg}, v{reg} row_half_mirror {DPP}')
        a(f'v_mov_b32 v44, v{reg}'); a('s_nop 1')
        a(f'v_permlane16_swap_b32 v44, v{reg}'); a('s_nop 1')
        a(f'v_{op}_f32 v{reg}, v44, v{reg}')
        a(f'v_mov_b32 v44, v{reg}'); a('s_nop 1')
        a(f'v_permlane32_swap_b32 v44, v{reg}'); a('s_nop 1')
        a(f'v_{op}_f32 v{reg}, v44, v{reg}')
    def maxred():
        stamp(3)
        xreduce(46, 'max')
        a('v_mul_f32 v46, s43, v46')
    def expchunk(k0, n):
        for k in range(k0, k0 + n): a(f'v_fma_f32 v{48+k}, v{48+k}, s43, -v46')
        for k in range(k0, k0 + n): a(f'v_exp_f32 v{48+k}, v{48+k}')
        a('s_nop 0')
        for k in range(k0, k0 + n):
            a(f'v_add_f32 v47, v47, v{48+k}')
            a(f'v_cvt_pk_bf16_f32 v{48+k}, v{48+k}, v{48+k}')
    def lred():
        xreduce(47, 'add')
        a('v_bfe_u32 v44, v1, 3, 1'); a('v_lshlrev_b32 v44, 5, v44')
        a('s_lshl_b32 s11, s3, 3'); a('v_add_u32 v44, s11, v44')
        a(f'ds_write_b64 v44, v[46:47] offset:{L_ST}')
    def vprep(k):
        p = 48 + k
        a(f'v_and_b32 v36, v{p}, v4'); a(f'v_and_b32 v37, v{p}, v5')
        a(f'v_and_b32_dpp v38, v{p}, v6 row_half_mirror {DPP}'); a(f'v_and_b32_dpp v39, v{p}, v7 row_half_mirror {DPP}')
        a(f'v_and_b32_dpp v40, v{p}, v4 row_half_mirror {DPP}'); a(f'v_and_b32_dpp v41, v{p}, v5 row_half_mirror {DPP}')
        a(f'v_and_b32 v42, v{p}, v6'); a(f'v_and_b32 v43, v{p}, v7')
        a('s_nop 1')
    def vmfma(k, j):
        i = 128 + 4 * k + j
        A = 'v[36:39]' if j < 2 else 'v[40:43]'
        acc = 'v[24:27]' if j % 2 == 0 else 'v[28:31]'
        a(f'{MF} {acc}, {A}, {slot(i)}, {acc}')
    def vstep(k):
        vprep(k)
        for j in range(4): vmfma(k, j)
    items = []
    for k in range(32): items.append((4*k+4, 4*k+4, (lambda k=k: kstep(k))))
    items.append((128, 128, maxred))
    for k0 in range(0, 32, 8): items.append((128, 128, (lambda k0=k0: expchunk(k0, 8))))
    items.append((128, 128, lred))
    for k in range(32): items.append((128+4*k+4, 128+4*k+4, ('v', k)))
    def run(it):
        if isinstance(it[2], tuple): vstep(it[2][1])
        else: it[2]()
    ops = []
    wo_at = {(NL - wopos * (4 - t) if wopos else NL): None for t in range(4)}
    wt = 0
    for i in range(NL):
        if wopos and wt < 4 and i == NL - wopos * (4 - wt):
            ops.append(('wo', wt)); wt += 1
        ops.append(('ld', i))
    while wt < 4:
        ops.append(('wo', wt)); wt += 1
    pos = {op: n for n, op in enumerate(ops)}
    def arrived_loads(nops):
        return sum(1 for op in ops[:max(nops, 0)] if op[0] == 'ld')
    nxt = 0; freed = 0; done_ops = 0
    for n, op in enumerate(ops):
        if op[0] == 'wo':
            wo_issue(op[1]); continue
        i = op[1]
        Dc = Dend if (nend and i >= NL - nend) else D
        if i >= Dc:
            need = pos[('ld', i - Dc)] + 1
            if need > done_ops:
                a(f's_waitcnt vmcnt({n - need})'); done_ops = need
        arrived = arrived_loads(done_ops)
        if i == R: qload_item()
        while i - R >= freed:
            assert items[nxt][0] <= arrived
            run(items[nxt]); freed = items[nxt][1]; nxt += 1
        issue(i)
        if i == D - 1: setup_a()
        if i == D + 1: setup_b()
        if i >= R and i < NL - 1 and items[nxt][0] <= arrived:
            run(items[nxt]); freed = items[nxt][1]; nxt += 1
    total = len(ops)
    while nxt < len(items):
        k = items[nxt][2][1]
        vprep(k)
        for j in range(4):
            need = pos[('ld', 128 + 4 * k + j)] + 1
            if need > done_ops:
                a(f's_waitcnt vmcnt({total - need})'); done_ops = need
            vmfma(k, j)
        nxt += 1
    stamp(4)
    c('--- workgroup combine')
    a('s_nop 6')
    a(f'ds_write_b128 v82, v[24:27] offset:{L_ACC}')
    a(f'ds_write_b128 v82, v[28:31] offset:{L_ACC+512}')
    a('s_waitcnt lgkmcnt(0)')
    a('s_barrier')
    a(f'ds_read_b128 v[32:35], v80 offset:{L_F}')
    for w in range(4): a(f'ds_read_b64 v[{36+2*w}:{37+2*w}], v83 offset:{L_ACC+2048*w}')
    a('s_waitcnt lgkmcnt(0)')
    a('v_mul_f32 v44, v32, v36'); a('v_mul_f32 v45, v32, v37')
    for w in range(1, 4):
        a(f'v_fmac_f32 v44, v{32+w}, v{36+2*w}'); a(f'v_fmac_f32 v45, v{32+w}, v{37+2*w}')
    a('v_cvt_pk_bf16_f32 v24, v44, v45')
    a('v_min_u32 v24, -2, v24')
    a('s_nop 1')
    for r in range(1, 4): a(f'v_mov_b32_dpp v{24+r}, v24 quad_perm:[{r},{r},{r},{r}] {DPP}')
    a('s_mov_b64 exec, s[46:47]')
    mstore('buffer_store_dwordx4 v[24:27], v84, s[56:59], 0 offen', 15)
    a('s_mov_b64 exec, -1')
    stamp(5)
    a('s_cmp_ge_u32 s7, 28')
    a('s_cbranch_scc1 L_final')
    c('--- stage 2: o @ wo for 64 rows x 32 columns, both batches')
    a('s_mov_b64 s[64:65], -1'); a('s_mov_b64 s[66:67], -1')
    a(f's_mov_b32 s11, {spin}')
    a('s_waitcnt vmcnt(1)')
    for t in range(2):
        for ct in range(2):
            r = 48 + 8 * t + 4 * ct
            a(f'ds_read_b64_tr_b16 v[{r}:{r+1}], v86 offset:{L_WO + t*2048 + ct*32}')
            a(f'ds_read_b64_tr_b16 v[{r+2}:{r+3}], v86 offset:{L_WO + t*2048 + ct*32 + 256}')
    lab('L_poll_p1')
    a('s_mov_b64 exec, s[64:65]')
    a('s_cbranch_execz L_p1_a')
    a('buffer_load_dwordx4 v[64:67], v85, s[56:59], 0 offen sc1')
    a('buffer_load_dwordx4 v[68:71], v85, s[56:59], 0 offen offset:1024 sc1')
    lab('L_p1_a')
    a('s_mov_b64 exec, s[66:67]')
    a('s_cbranch_execz L_p1_b')
    a('buffer_load_dwordx4 v[72:75], v85, s[56:59], s45 offen sc1')
    a('buffer_load_dwordx4 v[76:79], v85, s[56:59], s45 offen offset:1024 sc1')
    lab('L_p1_b')
    a('s_mov_b64 exec, -1')
    a('s_sub_u32 s11, s11, 1')
    a('s_cbranch_scc1 L_p1_ok')
    a('s_waitcnt vmcnt(0)')
    a('v_max3_u32 v44, v64, v65, v66'); a('v_max3_u32 v45, v72, v73, v74')
    a('v_max3_u32 v44, v44, v67, v68'); a('v_max3_u32 v45, v45, v75, v76')
    a('v_max3_u32 v44, v44, v69, v70'); a('v_max3_u32 v45, v45, v77, v78')
    a('v_max_u32 v44, v44, v71'); a('v_max_u32 v45, v45, v79')
    a('v_cmp_eq_u32 s[64:65], -1, v44'); a('v_cmp_eq_u32 s[66:67], -1, v45')
    a('s_or_b64 s[68:69], s[64:65], s[66:67]')
    a('s_cbranch_scc1 L_poll_p1')
    lab('L_p1_ok')
    a('s_waitcnt vmcnt(0) lgkmcnt(0)')
    stamp(6)
    for t in range(2):
        for b in range(2):
            for ct in range(2):
                d = 8 + 8 * b + 4 * ct; A = 64 + 8 * b + 4 * t; B = 48 + 8 * t + 4 * ct
                a(f'{MF} {vr(d)}, {vr(A)}, {vr(B)}, {"0" if t == 0 else vr(d)}')
    a('s_nop 4')
    for q in range(4):
        d = 8 + 4 * q
        a(f'v_add_f32 v{d}, v{d}, v{d+1}'); a(f'v_add_f32 v{d+2}, v{d+2}, v{d+3}')
    for q in range(4):
        d = 8 + 4 * q
        a(f'v_add_f32 v{d}, v{d}, v{d+2}')
    a('s_nop 1')
    a('v_permlane32_swap_b32 v8, v16'); a('v_permlane32_swap_b32 v12, v20')
    a('s_nop 0')
    a('v_add_f32 v8, v8, v16'); a('v_add_f32 v12, v12, v20')
    a('s_nop 1')
    a('v_permlane16_swap_b32 v8, v12')
    a('s_nop 0')
    a('v_add_f32 v8, v8, v12')
    a(f'ds_write_b32 v87, v8 offset:{L_S2}')
    a('s_waitcnt lgkmcnt(0)')
    a('s_barrier')
    lab('L_stream_done')
    finish('str')
    lab('L_final')
    a('s_cmp_ge_u32 s3, 2'); a('s_cbranch_scc1 L_stream_done')
    a('s_lshl_b32 s11, s6, 2'); a('s_add_u32 s11, s11, s7'); a('s_sub_u32 s11, s11, 28'); a('s_lshl_b32 s11, s11, 1'); a('s_add_u32 s14, s11, s3')
    a('s_cmp_ge_u32 s14, 56'); a('s_cbranch_scc1 L_stream_done')
    srd(60, 36, 1792)
    a('s_lshl_b32 s11, s14, 10'); a(f's_add_u32 s11, s11, {WS_P2}')
    a('v_lshl_add_u32 v2, v1, 4, s11')
    a('v_and_b32 v44, 3, v1'); a('v_lshlrev_b32 v3, 3, v44'); a('v_lshrrev_b32 v44, 4, v1'); a('v_lshl_add_u32 v3, v44, 1, v3')
    a('s_lshl_b32 s11, s14, 5'); a('v_add_u32 v3, s11, v3')
    a('s_mov_b32 s42, 0x0c0c0400'); a('s_mov_b32 s45, 0x04000c0c')
    a(f's_mov_b32 s11, {spin}')
    a('s_mov_b64 vcc, -1')
    lab('L_poll_p2')
    if p2poll == 'load':
        a('s_mov_b64 exec, vcc')
        a('buffer_load_dwordx4 v[8:11], v2, s[56:59], 0 offen sc1')
        a('s_mov_b64 exec, -1')
    else:
        a('s_mov_b64 exec, vcc')
        for r in range(8, 12): a(f'v_mov_b32 v{r}, 0')
        a('buffer_atomic_or_x2 v[8:9], v2, s[56:59], 0 offen sc0')
        a('buffer_atomic_or_x2 v[10:11], v2, s[56:59], 0 offen offset:8 sc0')
        a('s_mov_b64 exec, -1')
    a('s_sub_u32 s11, s11, 1')
    a('s_cbranch_scc1 L_p2_ok')
    a('s_waitcnt vmcnt(0)')
    a('v_perm_b32 v44, v9, v8, s42'); a('v_perm_b32 v45, v11, v10, s45')
    a('v_or_b32 v44, v44, v45')
    a('v_cmp_ne_u32 vcc, s12, v44')
    a('s_cbranch_vccnz L_poll_p2')
    lab('L_p2_ok')
    a('s_waitcnt vmcnt(0)')
    stamp(6)
    a('v_permlane32_swap_b32 v8, v10'); a('v_permlane32_swap_b32 v9, v11')
    a('s_nop 0')
    a('v_add_f32 v8, v8, v10'); a('v_add_f32 v9, v9, v11')
    a('s_nop 1')
    a('v_permlane16_swap_b32 v8, v9')
    a('s_nop 0')
    a('v_add_f32 v8, v8, v9')
    for sh in (8, 4):
        a('s_nop 1'); a(f'v_add_f32_dpp v8, v8, v8 row_ror:{sh} {DPP}')
    a('v_cvt_pk_bf16_f32 v8, v8, v8')
    a('s_mov_b32 exec_lo, 0x000f000f'); a('s_mov_b32 exec_hi, 0x000f000f')
    a('buffer_store_short v8, v3, s[60:63], 0 offen')
    a('s_cmp_lg_u32 s14, 0'); a('s_cbranch_scc1 L_final_done')
    a('s_mov_b64 exec, 1')
    a('v_mov_b32 v9, s12'); a('v_mov_b32 v10, 0')
    a('buffer_store_dword v9, v10, s[56:59], 0 offen')
    lab('L_final_done')
    finish('fin')

    lab('L_service')
    c('================= service wave =================')
    a('v_lshlrev_b32 v2, 4, v1')
    a('v_lshrrev_b32 v3, 3, v1'); a('v_lshlrev_b32 v3, 13, v3'); a('v_and_b32 v4, 7, v1'); a('v_lshl_add_u32 v3, v4, 4, v3')
    a('s_and_b32 s13, s7, 3'); a('s_lshr_b32 s14, s7, 2')
    a(f's_mul_i32 s11, s13, {112*8192}'); a('s_lshl_b32 s12, s6, 10'); a('s_add_u32 s11, s11, s12')
    a('s_lshl_b32 s12, s14, 7'); a('s_add_u32 s11, s11, s12')
    a('v_add_u32 v3, s11, v3')
    a(f's_mov_b32 m0, {L_X}')
    a('s_waitcnt lgkmcnt(0)')
    a('s_load_dword s46, s[40:41], 0')
    srd(48, 16, 1792); srd(52, 22, 448 * 8192)
    a('buffer_load_dwordx4 v2, s[48:51], 0 offen lds')
    a('buffer_load_dwordx4 v2, s[48:51], 0 offen offset:1024 lds')
    for i in range(14):
        a(f's_mov_b32 m0, {L_WQ + i*1024}')
        a(f's_mov_b32 s12, {i*8*8192}')
        a(f'buffer_load_dwordx4 v3, s[52:55], s12 offen {qflag} lds')
    srd(56, 40, WSZ); srd(60, 34, 896)
    a(f's_mov_b32 m0, {L_GW}')
    a('v_mov_b32 v124, 0'); a('v_mov_b32 v125, 0')
    a('buffer_load_dwordx4 v2, s[60:63], 0 offen lds')
    a('v_lshlrev_b32 v5, 3, v1')
    a(f'ds_write_b64 v5, v[124:125] offset:{L_ST}')
    a('s_getreg_b32 s47, hwreg(HW_REG_XCC_ID, 0, 3)')
    a('v_and_b32 v4, 1, v1'); a('v_mul_u32_u24 v6, 896, v4'); a('v_lshrrev_b32 v5, 4, v1'); a('v_lshl_add_u32 v6, v5, 4, v6')
    a('v_lshlrev_b32 v7, 10, v5'); a('v_bfe_u32 v4, v1, 2, 2'); a('v_lshl_add_u32 v7, v4, 7, v7')
    a('v_and_b32 v4, 3, v1'); a('v_lshl_add_u32 v7, v4, 3, v7')
    a('s_mul_i32 s12, s13, 224'); a('v_add_u32 v130, s12, v6')
    a('v_lshlrev_b32 v4, 3, v5'); a('v_sub_u32 v131, v130, v4')
    a('v_lshlrev_b32 v4, 9, v5'); a('v_sub_u32 v132, v7, v4')
    a('v_bfe_u32 v4, v1, 1, 2')
    for ct in range(4):
        a(f'v_cmp_eq_u32 vcc, {ct}, v4'); a('s_nop 1'); a(f'v_cndmask_b32 v{136+ct}, 0, -1, vcc')
    a('v_lshlrev_b32 v126, 6, v4'); a('v_lshl_add_u32 v126, v5, 4, v126'); a('v_and_b32 v4, 1, v1'); a('v_lshl_add_u32 v126, v4, 13, v126')
    a('s_lshl_b32 s11, s6, 14'); a('s_lshl_b32 s12, s13, 11'); a('s_add_u32 s11, s11, s12'); a('s_lshl_b32 s12, s14, 8'); a('s_add_u32 s11, s11, s12')
    a(f's_add_u32 s11, s11, {WS_QP}'); a('v_add_u32 v126, s11, v126')
    a('s_lshl_b32 s11, s6, 1'); a('s_add_u32 s11, s11, s8'); a('s_lshl_b32 s11, s11, 13'); a(f's_add_u32 s11, s11, {WS_QP}')
    a('v_add_u32 v127, s11, v2')
    a('s_waitcnt lgkmcnt(0)')
    c('--- tag = epoch with every byte incremented')
    a('s_and_b32 s11, s46, 0x7f7f7f7f'); a('s_add_u32 s11, s11, 0x01010101'); a('s_and_b32 s46, s46, 0x80808080'); a('s_xor_b32 s46, s46, s11')
    a('s_and_b32 s68, s46, 0xff'); a('s_bfe_u32 s69, s46, 0x80008'); a('s_bfe_u32 s70, s46, 0x80010'); a('s_lshr_b32 s71, s46, 24')
    a('s_lshl_b32 s11, s47, 8'); a('s_or_b32 s72, s68, s11')
    a('s_mov_b32 s42, 0x0c0c0400'); a('s_mov_b32 s45, 0x04000c0c')
    a('v_mov_b32 v140, 0xff'); a('v_mov_b32 v141, 0x7ff')
    a('s_waitcnt vmcnt(15)')
    for t in range(3): a(f'ds_read_b128 {vr(144+4*t)}, v130 offset:{L_X + 64*t}')
    a(f'ds_read_b64 v[156:157], v131 offset:{L_X + 192}')
    for ct in range(4):
        for r in (2, 3): a(f'v_mov_b32 v{160 + 16*ct + 12 + r}, 0'); a(f'v_mov_b32 v{8 + 16*ct + 12 + r}, 0')
    a('s_waitcnt lgkmcnt(0)')
    for ct in range(4):
        for r in range(14): a(f'v_and_b32 v{160 + 16*ct + r}, v{144+r}, v{136+ct}')
    a('s_waitcnt vmcnt(1)')
    stamp(1)
    for ct in range(4):
        for t in range(3):
            r = 8 + 16 * ct + 4 * t
            a(f'ds_read_b64_tr_b16 v[{r}:{r+1}], v7 offset:{L_WQ + 4096*t + 32*ct}')
            a(f'ds_read_b64_tr_b16 v[{r+2}:{r+3}], v7 offset:{L_WQ + 4096*t + 32*ct + 512}')
        r = 8 + 16 * ct + 12
        a(f'ds_read_b64_tr_b16 v[{r}:{r+1}], v132 offset:{L_WQ + 96*128 + 32*ct}')
    a('s_waitcnt lgkmcnt(0)')
    for q in range(16):
        a(f'{MF} v[120:123], {vr(8+4*q)}, {vr(160+4*q)}, {"0" if q == 0 else "v[120:123]"}')
    a('s_nop 7')
    def tag4(r, first='s68', m0='v140'):
        a(f'v_bfi_b32 v{r}, {m0}, {first}, v{r}')
        for j in range(1, 4): a(f'v_bfi_b32 v{r+j}, v140, s{68+j}, v{r+j}')
    tag4(120, 's72', 'v141')
    a('s_mov_b32 exec_lo, 0x00ff00ff'); a('s_mov_b32 exec_hi, 0x00ff00ff')
    a('buffer_store_dwordx4 v[120:123], v126, s[56:59], 0 offen sc1')
    a('s_mov_b64 exec, -1')
    stamp(2)
    c('--- mix gate g_b (lane parity = batch), computed while the q partials travel')
    a('v_lshlrev_b32 v4, 4, v5')
    a('s_waitcnt vmcnt(1)')
    for t in range(14): a(f'ds_read_b128 {vr(8+4*t)}, v4 offset:{L_GW + 64*t}')
    for t in range(14): a(f'ds_read_b128 {vr(64+4*t)}, v6 offset:{L_X + 64*t}')
    a('s_waitcnt lgkmcnt(0)')
    for t in range(14):
        a(f'{MF} v[144:147], {vr(8+4*t)}, {vr(64+4*t)}, {"0" if t == 0 else "v[144:147]"}')
    a('s_nop 7')
    def sigmoid(dst, src):
        a(f'v_mul_f32 v{dst}, 0xbfb8aa3b, v{src}'); a(f'v_exp_f32 v{dst}, v{dst}'); a('s_nop 0')
        a(f'v_add_f32 v{dst}, 1.0, v{dst}'); a(f'v_rcp_f32 v{dst}, v{dst}'); a('s_nop 0')
    sigmoid(128, 144)
    a('v_sub_f32 v129, 1.0, v128')
    a('v_readlane_b32 s73, v128, s8')
    a('s_mov_b32 s12, 4096')
    a('s_waitcnt vmcnt(0)')
    def tagchk(regs):
        for n, r in enumerate(regs):
            a(f'v_perm_b32 v133, v{r+1}, v{r}, s42'); a(f'v_perm_b32 v134, v{r+3}, v{r+2}, s45')
            a('v_or_b32 v133, v133, v134')
            if n == 0: a('v_xor_b32 v135, s46, v133')
            else:
                a('v_xor_b32 v133, s46, v133'); a('v_or_b32 v135, v135, v133')
        a('v_cmp_ne_u32 vcc, 0, v135')
    a(f's_mov_b32 s11, {spin}')
    lab('L_poll_q')
    a(f's_sleep {qsleep}')
    for q in range(8):
        a(f'buffer_load_dwordx4 {vr(8+4*q)}, v127, s[56:59], {"0" if q < 4 else "s12"} offen offset:{(q%4)*1024} sc1')
    a('s_sub_u32 s11, s11, 1')
    a('s_cbranch_scc1 L_q_ok')
    a('s_waitcnt vmcnt(0)')
    tagchk([8 + 4*q for q in range(8)])
    a('s_cbranch_vccnz L_poll_q')
    lab('L_q_ok')
    a('s_waitcnt vmcnt(0)')
    c('--- do all 32 workgroups of the class sit on my XCD?')
    a('v_xor_b32 v135, s72, v8')
    for q in range(1, 8):
        a(f'v_xor_b32 v133, s72, v{8+4*q}'); a('v_or_b32 v135, v135, v133')
    a('v_and_b32 v135, 0x700, v135')
    a('v_cmp_ne_u32 vcc, 0, v135')
    for hf in range(2):
        for j in range(4):
            r = 8 + 4 * hf + j
            a(f'v_add_f32 v{r}, v{r}, v{r+8}'); a(f'v_add_f32 v{r+16}, v{r+16}, v{r+24}')
    a('s_cmp_lg_u64 vcc, 0'); a(f's_cselect_b32 s15, 1, {1 if force_slow else 0}')
    for r in range(8, 16): a(f'v_add_f32 v{r}, v{r}, v{r+16}')
    for r in range(4): a(f'v_cvt_pk_bf16_f32 v{40+r}, v{8+2*r}, v{9+2*r}')
    a('v_lshlrev_b32 v4, 3, v1')
    a('v_mov_b32 v44, s15'); a('v_mov_b32 v45, s46'); a('v_mov_b32 v46, 0')
    a(f'ds_write_b64 v4, v[40:41] offset:{L_Q}')
    a(f'ds_write_b64 v4, v[42:43] offset:{L_Q+512}')
    a(f'ds_write_b64 v46, v[44:45] offset:{L_MODE}')
    a('s_waitcnt lgkmcnt(0)')
    stamp(3)
    def glu1_issue():
        a('s_mul_i32 s13, s7, 37'); a('s_lshr_b32 s13, s13, 8')
        a('s_mul_i32 s14, s13, 7'); a('s_sub_u32 s14, s7, s14')
        a('s_cmp_ge_u32 s13, 2'); a('s_cselect_b32 s48, s30, s28'); a('s_cselect_b32 s49, s31, s29')
        a('s_and_b32 s49, s49, 0xffff'); a(f's_mov_b32 s50, {448*3584}'); a('s_mov_b32 s51, 0x20000')
        a('v_lshrrev_b32 v4, 2, v1'); a('v_mul_u32_u24 v3, 3584, v4'); a('v_and_b32 v4, 3, v1'); a('v_lshl_add_u32 v3, v4, 4, v3')
        a('s_and_b32 s74, s13, 1'); a(f's_mul_i32 s11, s74, {224*3584}'); a('s_mul_i32 s12, s6, 448'); a('s_add_u32 s11, s11, s12')
        a('s_lshl_b32 s12, s14, 6'); a('s_add_u32 s11, s11, s12'); a('v_add_u32 v3, s11, v3')
        for i in range(14):
            a(f's_mov_b32 m0, {L_G1 + i*1024}')
            a(f's_mov_b32 s12, {i*16*3584}')
            a(f'buffer_load_dwordx4 v3, s[48:51], s12 offen {gflag} lds')
            if pg < 14: a(f's_waitcnt vmcnt({pg-1})')
    a('s_barrier')
    c('--- reset my part1 slots: 16 pieces of 64B')
    for r in range(4): a(f'v_mov_b32 v{120+r}, -1')
    a('v_lshrrev_b32 v4, 2, v1'); a('v_lshlrev_b32 v126, 10, v4'); a('v_and_b32 v4, 3, v1'); a('v_lshl_add_u32 v126, v4, 4, v126')
    a('s_lshl_b32 s11, s6, 1'); a('s_add_u32 s11, s11, s8'); a('s_lshl_b32 s11, s11, 14'); a('s_lshl_b32 s12, s5, 6'); a('s_add_u32 s11, s11, s12')
    a(f's_add_u32 s11, s11, {WS_P1}')
    mstore('buffer_store_dwordx4 v[120:123], v126, s[56:59], s11 offen', 15)
    a('s_cmp_ge_u32 s7, 28')
    a('s_cbranch_scc1 L_glu_done')
    c('--- GLU stage 1: 224 rows x 32 columns of w_gate or w_up')
    glu1_issue()
    a('v_or_b32 v142, v136, v138'); a('v_or_b32 v143, v137, v139')
    a('s_mul_i32 s12, s74, 448'); a('v_add_u32 v130, s12, v6')
    for t in range(7): a(f'ds_read_b128 {vr(64+4*t)}, v130 offset:{L_X + 64*t}')
    a('v_lshlrev_b32 v7, 9, v5'); a('v_bfe_u32 v4, v1, 2, 2'); a('v_lshl_add_u32 v7, v4, 6, v7')
    a('v_and_b32 v4, 3, v1'); a('v_lshl_add_u32 v7, v4, 3, v7')
    a('s_waitcnt lgkmcnt(0)')
    for ct in range(2):
        for r in range(28): a(f'v_and_b32 v{160 + 28*ct + r}, v{64+r}, v{142+ct}')
    srd(52, 32, 1792 * 896)
    a('v_lshrrev_b32 v4, 2, v1'); a('v_mul_u32_u24 v3, 896, v4'); a('v_and_b32 v4, 3, v1'); a('v_lshl_add_u32 v3, v4, 4, v3')
    a('s_mul_i32 s11, s6, 224'); a('s_lshl_b32 s12, s9, 7'); a('s_add_u32 s11, s11, s12'); a('s_mul_i32 s11, s11, 896')
    a('s_lshl_b32 s12, s10, 6'); a('s_add_u32 s11, s11, s12'); a('v_add_u32 v3, s11, v3')
    a('v_and_b32 v4, 1, v1'); a('v_lshlrev_b32 v126, 7, v4'); a('v_bfe_u32 v4, v1, 1, 1'); a('v_lshl_add_u32 v126, v4, 6, v126')
    a('v_lshl_add_u32 v126, v5, 4, v126')
    a('s_lshl_b32 s11, s6, 3'); a('s_add_u32 s11, s11, s14'); a('s_lshl_b32 s11, s11, 2'); a('s_add_u32 s11, s11, s13'); a('s_lshl_b32 s11, s11, 8')
    a(f's_add_u32 s75, s11, {WS_GP}')
    a('s_waitcnt vmcnt(0)')
    for i in range(8):
        if i == 6:
            a('s_cmp_lg_u32 s9, 0'); a('s_cbranch_scc1 L_wd_skip')
        a(f's_mov_b32 m0, {L_WD + i*1024}')
        a(f's_mov_b32 s12, {i*16*896}')
        a(f'buffer_load_dwordx4 v3, s[52:55], s12 offen {gflag} lds')
    lab('L_wd_skip')
    for ct in range(2):
        for t in range(7):
            r = 8 + 28 * ct + 4 * t
            a(f'ds_read_b64_tr_b16 v[{r}:{r+1}], v7 offset:{L_G1 + 2048*t + 32*ct}')
            a(f'ds_read_b64_tr_b16 v[{r+2}:{r+3}], v7 offset:{L_G1 + 2048*t + 32*ct + 256}')
    a('s_waitcnt lgkmcnt(0)')
    for q in range(14):
        a(f'{MF} v[120:123], {vr(8+4*q)}, {vr(160+4*q)}, {"0" if q == 0 else "v[120:123]"}')
    a('s_nop 7')
    tag4(120)
    a('s_mov_b32 exec_lo, 0x000f000f'); a('s_mov_b32 exec_hi, 0x000f000f')
    mstore('buffer_store_dwordx4 v[120:123], v126, s[56:59], s75 offen', 15)
    a('s_mov_b64 exec, -1')
    c('--- GLU stage 2: lane (b=l&1, t=(l>>1)&3, s=l>>4), f block j=min(4*hd2+t, 6)')
    a('v_bfe_u32 v4, v1, 1, 2'); a('s_lshl_b32 s11, s9, 2'); a('v_add_u32 v4, s11, v4'); a('v_min_u32 v4, 6, v4')
    a('v_lshlrev_b32 v127, 10, v4'); a('v_and_b32 v4, 1, v1'); a('v_lshl_add_u32 v127, v4, 7, v127'); a('v_lshl_add_u32 v127, v5, 5, v127')
    a('s_lshl_b32 s11, s6, 13'); a(f's_add_u32 s11, s11, {WS_GP}'); a('v_add_u32 v127, s11, v127')
    a(f's_mov_b32 s11, {spin}')
    lab('L_poll_h')
    a(f's_sleep {gsleep}')
    for q in range(8):
        a(f'buffer_load_dwordx4 {vr(8+4*q)}, v127, s[56:59], 0 offen offset:{(q>>1)*256 + (q&1)*16} sc1')
    a('s_sub_u32 s11, s11, 1')
    a('s_cbranch_scc1 L_h_ok')
    a('s_waitcnt vmcnt(0)')
    tagchk([8 + 4*q for q in range(8)])
    a('s_cbranch_vccnz L_poll_h')
    lab('L_h_ok')
    a('s_waitcnt vmcnt(0)')
    for t in range(4):
        for ct in range(2):
            r = 64 + 8 * t + 4 * ct
            a(f'ds_read_b64_tr_b16 v[{r}:{r+1}], v7 offset:{L_WD + 2048*t + 32*ct}')
            a(f'ds_read_b64_tr_b16 v[{r+2}:{r+3}], v7 offset:{L_WD + 2048*t + 32*ct + 256}')
    for j in range(8):
        a(f'v_add_f32 v{8+j}, v{8+j}, v{16+j}'); a(f'v_add_f32 v{24+j}, v{24+j}, v{32+j}')
    for j in range(8):
        sigmoid(8 + j, 8 + j)
        a(f'v_mul_f32 v{8+j}, v{8+j}, v{24+j}')
    for r in range(4): a(f'v_cvt_pk_bf16_f32 v{40+r}, v{8+2*r}, v{9+2*r}')
    for t in range(4):
        for r in range(4): a(f'v_and_b32 v{44 + 4*t + r}, v{40+r}, v{136+t}')
    a('s_waitcnt lgkmcnt(0)')
    a('s_nop 0')
    for t in range(4):
        if t == 3:
            a('s_cmp_lg_u32 s9, 0'); a('s_cbranch_scc1 L_t3_skip')
        for ct in range(2):
            d = 8 + 4 * ct
            a(f'{MF} {vr(d)}, {vr(64 + 8*t + 4*ct)}, {vr(44 + 4*t)}, {"0" if t == 0 else vr(d)}')
    lab('L_t3_skip')
    a('v_and_b32 v4, 1, v1'); a('v_lshlrev_b32 v4, 7, v4'); a('v_lshl_add_u32 v4, v5, 4, v4')
    a('s_nop 7')
    for r in range(8, 16): a(f'v_add_f32_dpp v{r}, v{r}, v{r} quad_perm:[2,3,0,1] {DPP}')
    for r in range(8, 16): a(f'v_add_f32_dpp v{r}, v{r}, v{r} row_ror:4 {DPP}')
    for r in range(8, 16): a(f'v_mul_f32 v{r}, v129, v{r}')
    a(f'ds_write_b128 v4, v[8:11] offset:{L_GL}')
    a(f'ds_write_b128 v4, v[12:15] offset:{L_GL+64}')
    lab('L_glu_done')
    stamp(4)
    c('--- softmax statistics: every lane reads wave w=l&3 of both heads')
    a('v_and_b32 v6, 3, v1'); a('v_lshlrev_b32 v6, 3, v6')
    a(f's_mov_b32 s11, {spin*4}')
    lab('L_poll_st')
    a('s_sleep 16')
    a(f'ds_read_b64 v[8:9], v6 offset:{L_ST}')
    a(f'ds_read_b64 v[10:11], v6 offset:{L_ST+32}')
    a('s_sub_u32 s11, s11, 1')
    a('s_cbranch_scc1 L_st_ok')
    a('s_waitcnt lgkmcnt(0)')
    a('v_min_u32 v4, v9, v11')
    a('v_cmp_eq_u32 vcc, 0, v4')
    a('s_cbranch_vccnz L_poll_st')
    lab('L_st_ok')
    a('s_waitcnt lgkmcnt(0)')
    for hd in range(2):
        m, l, M, Ls = 8 + 2*hd, 9 + 2*hd, 12 + 2*hd, 13 + 2*hd
        a(f'v_max_f32_dpp v{M}, v{m}, v{m} quad_perm:[1,0,3,2] {DPP}'); a('s_nop 1')
        a(f'v_max_f32_dpp v{M}, v{M}, v{M} quad_perm:[2,3,0,1] {DPP}')
        a(f'v_bfi_b32 v{M}, v140, s{68+2*hd}, v{M}')
        a(f'v_sub_f32 v{Ls}, v{m}, v{M}'); a(f'v_exp_f32 v{Ls}, v{Ls}'); a('s_nop 0'); a(f'v_mul_f32 v{Ls}, v{Ls}, v{l}'); a('s_nop 1')
        a(f'v_add_f32_dpp v{Ls}, v{Ls}, v{Ls} quad_perm:[1,0,3,2] {DPP}'); a('s_nop 1')
        a(f'v_add_f32_dpp v{Ls}, v{Ls}, v{Ls} quad_perm:[2,3,0,1] {DPP}')
        a(f'v_bfi_b32 v{Ls}, v140, s{69+2*hd}, v{Ls}')
    a('s_lshl_b32 s12, s6, 9'); a(f's_add_u32 s12, s12, {WS_SG}'); a('s_lshl_b32 s13, s7, 4'); a('s_add_u32 s13, s13, s12')
    a('v_mov_b32 v4, 0')
    a('s_waitcnt vmcnt(0)')
    a('s_mov_b64 exec, 1')
    mstore('buffer_store_dwordx4 v[12:15], v4, s[56:59], s13 offen', 15)
    a('s_mov_b64 exec, -1')
    a('v_and_b32 v7, 31, v1'); a('s_lshl_b32 s13, s8, 4'); a('v_xor_b32 v7, s13, v7'); a('v_lshl_add_u32 v7, v7, 4, s12')
    a(f's_mov_b32 s11, {spin}')
    lab('L_poll_sg')
    a(f's_sleep {ssleep}')
    a('buffer_load_dwordx4 v[16:19], v7, s[56:59], 0 offen sc1')
    a('s_sub_u32 s11, s11, 1')
    a('s_cbranch_scc1 L_sg_ok')
    a('s_waitcnt vmcnt(0)')
    tagchk([16])
    a('s_cbranch_vccnz L_poll_sg')
    lab('L_sg_ok')
    a('s_waitcnt vmcnt(0)')
    a('v_lshrrev_b32 v6, 1, v6')
    for hd in range(2):
        M, Ls, m = 16 + 2*hd, 17 + 2*hd, 8 + 2*hd
        a(f'v_max_f32_dpp v20, v{M}, v{M} row_ror:8 {DPP}')
        for sh in (4, 2, 1):
            a('s_nop 1'); a(f'v_max_f32_dpp v20, v20, v20 row_ror:{sh} {DPP}')
        a(f'v_sub_f32 v21, v{M}, v20'); a('v_exp_f32 v21, v21'); a('s_nop 0'); a(f'v_mul_f32 v21, v21, v{Ls}')
        for sh in (8, 4, 2, 1):
            a('s_nop 1'); a(f'v_add_f32_dpp v21, v21, v21 row_ror:{sh} {DPP}')
        a('v_rcp_f32 v21, v21')
        a(f'v_sub_f32 v22, v{m}, v20'); a('v_exp_f32 v22, v22'); a('s_nop 0')
        a('v_mul_f32 v22, v22, v21'); a('v_mul_f32 v22, s73, v22')
        a('s_mov_b64 exec, 15')
        a(f'ds_write_b32 v6, v22 offset:{L_F + 16*hd}')
        a('s_mov_b64 exec, -1')
    c('--- stage-2 publication addresses')
    a('v_lshlrev_b32 v4, 2, v1')
    a(f'ds_read_b32 v24, v4 offset:{L_GL}')
    a('v_lshrrev_b32 v4, 5, v1'); a('v_mul_u32_u24 v3, 28, v4'); a('v_and_b32 v4, 1, v5'); a('v_add_u32 v3, v3, v4'); a('v_lshlrev_b32 v3, 10, v3')
    a('v_and_b32 v4, 15, v1'); a('v_lshl_add_u32 v3, v4, 2, v3')
    a('s_lshl_b32 s11, s10, 11'); a('s_lshl_b32 s12, s6, 7'); a('s_add_u32 s11, s11, s12'); a('s_lshl_b32 s12, s9, 6'); a('s_add_u32 s11, s11, s12')
    a(f's_add_u32 s11, s11, {WS_P2}'); a('v_add_u32 v3, s11, v3')
    a('v_and_b32 v4, 3, v1'); a('v_lshlrev_b32 v4, 3, v4'); a('v_lshrrev_b32 v25, v4, s46')
    a('s_mov_b32 s64, 0x11111111'); a('s_mov_b32 s65, 0x11111111')
    a('s_waitcnt lgkmcnt(0)')
    stamp(5)
    a('s_barrier')
    a('s_cmp_ge_u32 s7, 28')
    a('s_cbranch_scc1 L_service_done')
    a('s_barrier')
    a(f'ds_read_b128 v[8:11], v2 offset:{L_S2}')
    a('s_waitcnt lgkmcnt(0)')
    a('v_add_f32 v8, v8, v9'); a('v_add_f32 v10, v10, v11'); a('v_add_f32 v8, v8, v24'); a('v_add_f32 v8, v8, v10')
    a('v_bfi_b32 v8, v140, v25, v8')
    a('s_nop 1')
    for r in range(1, 4): a(f'v_mov_b32_dpp v{8+r}, v8 quad_perm:[{r},{r},{r},{r}] {DPP}')
    a('s_mov_b64 exec, s[64:65]')
    a('buffer_store_dwordx4 v[8:11], v3, s[56:59], 0 offen sc1')
    stamp(6)
    lab('L_service_done')
    finish('svc')
    lab('L_end')
    a('s_endpgm')
    L.append('.section .rodata,"a"'); L.append('.p2align 6'); L.append(f'.amdhsa_kernel {name}_kernel')
    L.append('  .amdhsa_next_free_vgpr 256'); L.append('  .amdhsa_next_free_sgpr 102'); L.append('  .amdhsa_accum_offset 256')
    L.append('  .amdhsa_group_segment_fixed_size 0'); L.append('  .amdhsa_kernarg_size 104'); L.append('  .amdhsa_user_sgpr_count 2')
    L.append('  .amdhsa_user_sgpr_kernarg_segment_ptr 1'); L.append('  .amdhsa_system_sgpr_workgroup_id_x 1')
    L.append('  .amdhsa_float_denorm_mode_32 3')
    L.append('.end_amdhsa_kernel')
    return '\n'.join(L) + '\n'

if __name__ == '__main__':
    kw = json.loads(sys.argv[2]) if len(sys.argv) > 2 else {}
    open(sys.argv[1], 'w').write(gen(**kw))
```
